```python
import torch

def _softmax(x, axis=-1):
    return torch.softmax(x, dim=axis)
def _gelu(x):
    return torch.nn.functional.gelu(x, approximate="tanh")
def _silu(x):
    return torch.nn.functional.silu(x)
def _sigmoid(x):
    return torch.sigmoid(x)
def _layernorm(x, axis=-1, eps=1e-5):
    m = x.mean(dim=axis, keepdim=True)
    v = x.var(dim=axis, keepdim=True, unbiased=False)
    return (x - m) / torch.sqrt(v + eps)
def _scatter_add(tgt, idx, src, axis=0):
    return tgt.clone().index_add_(axis, idx, src)
def _segment_sum(src, seg, n):
    out = torch.zeros((n,) + src.shape[1:], dtype=src.dtype)
    return out.index_add_(0, seg, src)
def _pad(x, pw):
    flat = tuple(v for pair in reversed(pw) for v in pair)
    return torch.nn.functional.pad(x, flat)

kernel_name = 'recurrent_scan__sliding_block_cached__swiglu_ffn__decode'

def setup_inputs():

    _w = (lambda a: (lambda t: t.to(torch.bfloat16) if t.is_floating_point() else t)(torch.as_tensor(a)))
    def _A_setup():
        B, Sq, D = 4, 1, 512
        Hq, Hkv, Sk, Dh = 32, 8, 16384, 128
        assert Hq % Hkv == 0, (Hq, Hkv)
        return {
            "x": _w((lambda *s: torch.randn(*s, dtype=torch.bfloat16) * 0.05)(B, Sq, D)),
            "k_cache": _w((lambda *s: torch.randn(*s, dtype=torch.bfloat16) * 1.6)(B, Hkv, Sk, Dh)),
            "v_cache": _w((lambda *s: torch.randn(*s, dtype=torch.bfloat16) * 0.2)(B, Hkv, Sk, Dh)),
            "wq": _w((lambda *s: torch.randn(*s, dtype=torch.bfloat16) * 1.6)(D, Hq * Dh) * (D ** -0.5)),
            "wo": _w((lambda *s: torch.randn(*s, dtype=torch.bfloat16) * 0.2)(Hq * Dh, D) * ((Hq * Dh) ** -0.5)),
        }
    _A_in = _A_setup()

    def _B_setup():
        B, S, D, F = 4, 1, 512, 1792
        return {
            "x": _w((lambda *s: torch.randn(*s, dtype=torch.bfloat16) * 0.05)(B, S, D)),
            "w_gate": _w((lambda *s: torch.randn(*s, dtype=torch.bfloat16) * 0.1)(D, F)),
            "w_up": _w((lambda *s: torch.randn(*s, dtype=torch.bfloat16) * 0.1)(D, F)),
            "w_down": _w((lambda *s: torch.randn(*s, dtype=torch.bfloat16) * 0.1)(F, D)),
        }
    _B_in = _B_setup()

    return {
        "A_x": _A_in["x"],
        "A_k_cache": _A_in["k_cache"],
        "A_v_cache": _A_in["v_cache"],
        "A_wq": _A_in["wq"],
        "A_wo": _A_in["wo"],
        "B_x": _B_in["x"],
        "B_w_gate": _B_in["w_gate"],
        "B_w_up": _B_in["w_up"],
        "B_w_down": _B_in["w_down"],
    }

def reference(A_x, A_k_cache, A_v_cache, A_wq, A_wo, B_x, B_w_gate, B_w_up, B_w_down):
    def _A_ref(x, k_cache, v_cache, wq, wo):
        B, Sq, D = x.shape
        Hq, Dh = 32, 128
        Hkv, Sk = k_cache.shape[1], k_cache.shape[2]
        W = min(4096, max(256, Sk // 4))
        rep = Hq // Hkv
        q = (lambda x, *d: x.permute(*d))((x @ wq).reshape(B, Sq, Hq, Dh), 0, 2, 1, 3)
        k = (lambda x, n, axis: torch.repeat_interleave(x, n, dim=axis))(k_cache[:, :, Sk - W:, :], rep, axis=1)
        v = (lambda x, n, axis: torch.repeat_interleave(x, n, dim=axis))(v_cache[:, :, Sk - W:, :], rep, axis=1)
        scores = torch.einsum("bhqd,bhkd->bhqk", q, k) * (Dh ** -0.5)
        p = _softmax(scores, axis=-1)
        o = torch.einsum("bhqk,bhkd->bhqd", p, v)
        return (lambda x, *d: x.permute(*d))(o, 0, 2, 1, 3).reshape(B, Sq, Hq * Dh) @ wo

    def _B_ref(x, w_gate, w_up, w_down):
        g = _silu(x @ w_gate)
        u = x @ w_up
        return (g * u) @ w_down

    x = A_x
    xn = _layernorm(x, axis=-1)
    s = _A_ref(xn, A_k_cache, A_v_cache, A_wq, A_wo)
    g = _silu(_B_ref(xn, B_w_gate, B_w_up, B_w_down))
    return x + s * g
```

```python
import re

TRANS = ("v_exp_", "v_log_", "v_rcp_", "v_rsq_", "v_sqrt_", "v_sin_", "v_cos_")

def regs_of(op):
    op = op.strip()
    op = op.lstrip("-")
    m = re.fullmatch(r"abs\((.*)\)", op)
    if m: op = m.group(1)
    op = op.strip("|")
    m = re.fullmatch(r"([vsa])(\d+)", op)
    if m: return {(m.group(1), int(m.group(2)))}
    m = re.fullmatch(r"([vsa])\[(\d+):(\d+)\]", op)
    if m: return {(m.group(1), i) for i in range(int(m.group(2)), int(m.group(3)) + 1)}
    if op in ("vcc", "vcc_lo", "vcc_hi"): return {("x", "vcc")}
    if op in ("exec", "exec_lo", "exec_hi"): return {("x", "exec")}
    if op == "m0": return {("x", "m0")}
    return set()

class Ins:
    def __init__(self, text):
        self.text = text
        t = text.split(";")[0].strip()
        parts = t.split(None, 1)
        self.mn = parts[0]
        rest = parts[1] if len(parts) > 1 else ""
        ops, depth, cur = [], 0, ""
        for ch in rest:
            if ch == "[": depth += 1
            if ch == "]": depth -= 1
            if ch == "," and depth == 0:
                ops.append(cur.strip()); cur = ""
            else: cur += ch
        if cur.strip(): ops.append(cur.strip())
        self.mods = ""
        if ops:
            last = ops[-1].split(None, 1)
            ops[-1] = last[0]
            if len(last) > 1: self.mods = last[1]
        self.ops = ops
        mn = self.mn
        self.is_mfma = mn.startswith("v_mfma")
        self.is_valu = mn.startswith("v_") and not self.is_mfma
        self.is_trans = mn.startswith(TRANS)
        self.is_dpp = "_dpp" in mn or "quad_perm" in self.mods or "row_" in self.mods
        self.is_perm = mn.startswith("v_permlane")
        self.is_rl = mn.startswith("v_readfirstlane") or mn.startswith("v_readlane")
        self.is_vmem = mn.startswith(("buffer_", "global_", "flat_"))
        self.is_ds = mn.startswith("ds_")
        self.is_salu = mn.startswith("s_")
        self.lds_dma = self.is_vmem and (" lds" in (" " + self.mods) or "_lds_" in mn)
        R = [regs_of(o) for o in ops]
        self.w, self.r = set(), set()
        self.A = self.B = self.C = set()
        self.store_data = set()
        if self.is_mfma:
            self.w = R[0]; self.A, self.B, self.C = R[1], R[2], R[3]; self.r = R[1] | R[2] | R[3]
            self.passes = 8 if "32x32" in mn else 4
        elif self.is_valu:
            if self.is_perm and "swap" in mn:
                self.w = R[0] | R[1]; self.r = R[0] | R[1]
            elif mn.startswith(("v_add_co", "v_sub_co", "v_addc_co", "v_subb_co", "v_subrev_co")):
                self.w = R[0] | R[1]; self.r = set().union(*R[2:])
            else:
                self.w = R[0]; self.r = set().union(*R[1:]) if len(R) > 1 else set()
                if mn.startswith(("v_fmac", "v_dot2c", "v_mac", "v_pk_fmac")) or self.is_dpp: self.r |= R[0]
                if mn.startswith("v_cndmask") and len(ops) == 3: self.r |= {("x", "vcc")}
        elif self.is_vmem:
            if "store" in mn or ("atomic" in mn):
                self.r = set().union(*R)
                d = R[1] if mn.startswith("global") else R[0]
                if "x4" in mn or "x3" in mn: self.store_data = d
            elif self.lds_dma:
                self.r = set().union(*R) | {("x", "m0")}
            else:
                self.w = R[0]; self.r = set().union(*R[1:])
        elif self.is_ds:
            if mn.startswith(("ds_read", "ds_bpermute", "ds_permute", "ds_swizzle")) or "_rtn" in mn:
                self.w = R[0]; self.r = set().union(*R[1:])
            else:
                self.r = set().union(*R)
        elif self.is_salu:
            if mn.startswith(("s_cmp", "s_cbranch", "s_branch", "s_waitcnt", "s_nop", "s_barrier", "s_endpgm", "s_setprio", "s_sleep", "s_bitcmp", "s_setpc")):
                self.r = set().union(*R) if R else set()
            else:
                self.w = R[0] if R else set(); self.r = set().union(*R[1:]) if len(R) > 1 else set()
                if "saveexec" in mn: self.w = self.w | {("x", "exec")}
        self.states = 1
        if mn == "s_nop": self.states = int(ops[0], 0) + 1

def vonly(s): return {x for x in s if x[0] in "va"}
def sonly(s): return {x for x in s if x[0] == "s" or x == ("x", "vcc")}

def need(p, c):
    n = 0
    if p.is_valu:
        pv = vonly(p.w); ps = sonly(p.w)
        if c.is_mfma and pv & c.r: n = max(n, 2)
        if c.is_valu and c.is_dpp and pv & c.r: n = max(n, 2)
        if c.is_perm and pv & c.r: n = max(n, 2)
        if c.is_rl and pv & c.r: n = max(n, 1)
        if p.is_trans and (c.is_valu and not c.is_trans or c.is_mfma) and pv & c.r: n = max(n, 1)
        if ps:
            if c.is_valu and ps & c.r: n = max(n, 4 if c.is_rl else 2)
            if c.is_vmem and ps & c.r: n = max(n, 5)
            if c.is_salu and ps & c.r: n = max(n, 1)
    if p.is_mfma:
        big = {4: 8, 8: 12}[p.passes]
        if c.is_mfma:
            if p.w & (c.A | c.B): n = max(n, big)
            if p.w & c.C and p.w != c.C: n = max(n, big - 2)
            if p.w & c.w and p.w != c.C and not (p.w & c.C): n = max(n, big)
        elif c.is_valu:
            if p.w & (c.r | c.w): n = max(n, big)
            if p.C & c.w: n = max(n, {4: 3, 8: 7}[p.passes])
        elif c.is_vmem or c.is_ds:
            if p.w & (c.r | c.w): n = max(n, big)
    if p.is_salu and ("x", "m0") in p.w and c.lds_dma: n = max(n, 1)
    if p.store_data and (p.store_data & c.w): n = max(n, 2)
    return n

class Asm:
    def __init__(self):
        self.out = []
        self.hist = []
        self.nops = 0
    def raw(self, t): self.out.append(t)
    def label(self, l): self.out.append(l + ":")
    def reset(self): self.hist = []
    def c(self, t): self.out.append("    ; " + t)
    def __call__(self, text):
        for t in text.split("\n"):
            t = t.strip()
            if not t: continue
            if t.startswith(";"): self.out.append("    " + t); continue
            self.emit(t)
    def emit(self, t):
        ins = Ins(t)
        dist = 0; req = 0
        for p in reversed(self.hist[-24:]):
            n = need(p, ins)
            if n > dist: req = max(req, n - dist)
            dist += p.states
            if dist > 20: break
        if req > 0:
            k = req
            while k > 0:
                q = min(k, 16)
                nop = Ins(f"s_nop {q-1}")
                self.out.append(f"    s_nop {q-1}"); self.hist.append(nop); k -= q
            self.nops += req
        self.out.append("    " + t)
        self.hist.append(ins)
    def text(self): return "\n".join(self.out) + "\n"
```

```python
import sys, struct, math
sys.path.insert(0, "work")
from asmlib import Asm

NAME = "recurrent_scan__sliding_block_cached__swiglu_ffn__decode"

def f2u(x): return struct.unpack("<I", struct.pack("<f", x))[0]

WS_E    = 0x0
WS_QBOX = 0x10000
WS_HBOX = 0x20000
WS_SBOX = 0x28000
WS_OBOX = 0x80000
WS_SIN  = 0x100000
WS_FIN  = 0x180000
WS_STAMP = 0x400000
L_XN, XNP = 0x0, 1088
L_QF = 0x1100
L_ST = 0x1500
L_F  = 0x1600
L_GX = 0x1680
L_OB, OBP = 0x1700, 192
L_ORED, ORP = 0x2000, 2080
L_WQ = 0x6400
L_GA = 0xA400
L_UP = 0xC400
L_DN = 0xE400
L_WO = 0x10400
L_TOTAL = 0x14400

DPP = "row_mask:0xf bank_mask:0xf"

def gen(stamps=False, cap=4, wflags="nt", kvflags="nt", nv_early=4, nv_mid=4, wo_pos="end", spin=1 << 20):
    A = Asm()
    A.raw(f"; @launch grid=(256,1,1) block=(576,1,1) lds={L_TOTAL}")
    A.raw('.amdgcn_target "amdgcn-amd-amdhsa--gfx950"')
    A.raw(".text"); A.raw(f".globl {NAME}_kernel"); A.raw(".p2align 8"); A.raw(f".type {NAME}_kernel,@function")
    A.label(f"{NAME}_kernel")
    nst = [0]
    def stamp():
        if stamps:
            k = nst[0]; nst[0] += 1
            assert k < 11
            A(f"s_memrealtime s[{80+2*k}:{81+2*k}]")
    def dump_stamps(vtmp, vaddr):
        if not stamps: return
        A("s_waitcnt lgkmcnt(0)")
        A("s_mov_b64 exec, 1")
        A("s_mul_i32 s72, s2, 9"); A("s_add_u32 s72, s72, s3"); A("s_lshl_b32 s72, s72, 6"); A(f"s_add_u32 s72, s72, {WS_STAMP}")
        A(f"v_mov_b32 v{vaddr}, s72")
        for k in range(nst[0]):
            A(f"v_mov_b32 v{vtmp}, s{80+2*k}")
            A(f"global_store_dword v{vaddr}, v{vtmp}, s[26:27] offset:{4*k}")
    T0, T1, T2, T3 = "s48", "s49", "s50", "s51"
    TAU = [T0, T1, T2, T3]
    def tags_from_epoch():
        A("s_add_u32 s52, s52, 1")
        A("s_and_b32 s48, s52, 0xff")
        A("s_xor_b32 s49, s48, 0x55"); A("s_xor_b32 s50, s48, 0xaa"); A("s_xor_b32 s51, s48, 0xff")
    pollid = [0]
    def poll(loads, acc, acc2):
        n = pollid[0]; pollid[0] += 1
        A.label(f"L_poll{n}")
        for d, va, off in loads:
            A(f"global_load_dwordx4 v[{d}:{d+3}], v{va}, s[26:27] offset:{off} sc1")
        A("s_add_u32 s53, s53, 1")
        A(f"s_cmp_gt_u32 s53, {spin}")
        A("s_cbranch_scc1 L_end")
        first = True
        for q, (d, va, off) in enumerate(loads):
            A(f"s_waitcnt vmcnt({len(loads)-1-q})")
            if first:
                A(f"v_xor_b32 v{acc}, {T0}, v{d}")
                A(f"v_xor_b32 v{acc2}, {T1}, v{d+1}")
                first = False
            else:
                A(f"v_bitop3_b32 v{acc}, v{acc}, v{d}, {T0} bitop3:0xf6")
                A(f"v_bitop3_b32 v{acc2}, v{acc2}, v{d+1}, {T1} bitop3:0xf6")
            A(f"v_bitop3_b32 v{acc}, v{acc}, v{d+2}, {T2} bitop3:0xf6")
            A(f"v_bitop3_b32 v{acc2}, v{acc2}, v{d+3}, {T3} bitop3:0xf6")
        A(f"v_or_b32 v{acc}, v{acc}, v{acc2}")
        A(f"v_and_b32 v{acc}, 0xff, v{acc}")
        A(f"v_cmp_ne_u32 vcc, 0, v{acc}")
        A(f"s_cbranch_vccnz L_poll{n}")
    def srd(s, lo, size):
        A(f"s_mov_b32 s{s}, s{lo}"); A(f"s_mov_b32 s{s+1}, s{lo+1}")
        A(f"s_mov_b32 s{s+2}, {size}"); A(f"s_mov_b32 s{s+3}, 0x20000")
    def allred8(op, v, t=None):
        A(f"{op}_dpp v{v}, v{v}, v{v} quad_perm:[1,0,3,2] {DPP}")
        A(f"{op}_dpp v{v}, v{v}, v{v} quad_perm:[2,3,0,1] {DPP}")
        A(f"{op}_dpp v{v}, v{v}, v{v} row_half_mirror {DPP}")
    def allred_rows(op, v, t):
        A(f"v_mov_b32 v{t}, v{v}"); A(f"v_permlane16_swap_b32 v{v}, v{t}"); A(f"{op} v{v}, v{v}, v{t}")
        A(f"v_mov_b32 v{t}, v{v}"); A(f"v_permlane32_swap_b32 v{v}, v{t}"); A(f"{op} v{v}, v{v}, v{t}")
    def reduce64x8(a):
        for k in range(4): A(f"v_permlane32_swap_b32 v{a+k}, v{a+4+k}")
        for k in range(4): A(f"v_add_f32 v{a+k}, v{a+k}, v{a+4+k}")
        for k in range(2): A(f"v_permlane16_swap_b32 v{a+k}, v{a+2+k}")
        for k in range(2): A(f"v_add_f32 v{a+k}, v{a+k}, v{a+2+k}")
        for r in (8, 4, 2, 1):
            for k in range(2): A(f"v_add_f32_dpp v{a+k}, v{a+k}, v{a+k} row_ror:{r} {DPP}")
    CSC = f2u(math.log2(math.e) / math.sqrt(128.0))
    NLOG2E = f2u(-math.log2(math.e))

    stamp()
    A("s_cmp_ge_u32 s2, 256")
    A("s_cbranch_scc1 L_end")
    A("s_load_dwordx16 s[4:19], s[0:1], 0")
    A("s_load_dwordx8 s[20:27], s[0:1], 64")
    A("v_lshrrev_b32 v1, 6, v0")
    A("v_and_b32 v0, 63, v0")
    A("v_readfirstlane_b32 s3, v1")
    A("s_and_b32 s28, s2, 7")
    A("s_lshr_b32 s29, s2, 3")
    A("s_lshr_b32 s30, s2, 6")
    A("s_and_b32 s31, s29, 7")
    A("s_mov_b32 s53, 0")
    A("v_mov_b32 v2, 0xffffff00")
    A("v_lshrrev_b32 v3, 4, v0")
    A("s_cmp_lg_u32 s3, 0")
    A("s_cbranch_scc1 L_kv")

    A("s_setprio 3")
    A("v_and_b32 v4, 15, v0")
    A("v_lshlrev_b32 v5, 4, v4")
    A("v_lshl_add_u32 v5, v3, 10, v5")
    A("v_lshrrev_b32 v6, 1, v0"); A("v_lshlrev_b32 v6, 13, v6")
    A("v_and_b32 v7, 1, v0"); A("v_lshl_add_u32 v6, v7, 4, v6")
    A("v_mul_u32_u24 v7, 3584, v0")
    A("v_lshrrev_b32 v8, 3, v0"); A("v_lshlrev_b32 v8, 10, v8")
    A("v_and_b32 v9, 7, v0"); A("v_lshl_add_u32 v8, v9, 4, v8")
    A("s_mul_i32 s54, s28, 28"); A("s_add_u32 s54, s54, s29")
    A("s_lshr_b32 s55, s54, 3")
    A("s_and_b32 s56, s54, 7")
    A("s_lshl_b32 s57, s28, 10"); A("s_lshl_b32 s72, s29, 5"); A("s_add_u32 s57, s57, s72")
    A("s_lshl_b32 s58, s54, 4")
    A("s_lshl_b32 s59, s55, 16"); A("s_lshl_b32 s72, s56, 7"); A("s_add_u32 s59, s59, s72")
    A("s_cmp_lt_u32 s29, 28")
    A("s_cselect_b32 s60, 0x1c0000, 0")
    A("s_waitcnt lgkmcnt(0)")
    stamp()
    XR = 16
    for t in range(4):
        A(f"global_load_dwordx4 v[{XR+4*t}:{XR+4*t+3}], v5, s[4:5] offset:{256*t}")
    A("s_load_dword s52, s[26:27], 0")
    srd(32, 10, "0x400000"); srd(36, 16, "s60"); srd(40, 18, "s60"); srd(44, 20, "s60")
    def dma(vaddr, srdn, sbase, step, n, ldsbase, flags):
        for t in range(n):
            A(f"s_add_u32 s72, s{sbase}, {t*step}")
            A(f"s_mov_b32 m0, {ldsbase + t*1024}")
            A(f"buffer_load_dwordx4 v{vaddr}, s[{srdn}:{srdn+3}], s72 offen {flags} lds")
    dma(6, 32, 57, 32 * 8192, 16, L_WQ, wflags)
    dma(7, 36, 58, 64 * 3584, 8, L_GA, wflags)
    dma(7, 40, 58, 64 * 3584, 8, L_UP, wflags)
    dma(8, 44, 59, 8192, 8, L_DN, wflags)
    A("s_lshl_b32 s72, s2, 4")
    A("v_lshl_add_u32 v9, v3, 2, s72")
    A("global_load_dword v10, v9, s[4:5]")
    FX = 32
    A("s_waitcnt vmcnt(41)")
    stamp()
    for k in range(16):
        A(f"v_lshlrev_b32 v{FX+2*k}, 16, v{XR+k}")
        A(f"v_and_b32 v{FX+2*k+1}, 0xffff0000, v{XR+k}")
    S = 64
    for k in range(8): A(f"v_pk_add_f32 v[{S+2*k}:{S+2*k+1}], v[{FX+4*k}:{FX+4*k+1}], v[{FX+4*k+2}:{FX+4*k+3}]")
    for n in (4, 2, 1):
        for k in range(n): A(f"v_pk_add_f32 v[{S+2*k}:{S+2*k+1}], v[{S+2*k}:{S+2*k+1}], v[{S+2*(k+n)}:{S+2*(k+n)+1}]")
    A(f"v_add_f32 v12, v{S}, v{S+1}")
    for r in (8, 4, 2, 1): A(f"v_add_f32_dpp v12, v12, v12 row_ror:{r} {DPP}")
    A(f"v_mul_f32 v12, {hex(f2u(1/512))}, v12")
    for k in range(16):
        A(f"v_pk_add_f32 v[{S+2*k}:{S+2*k+1}], v[{FX+2*k}:{FX+2*k+1}], v[12:13] op_sel_hi:[1,0] neg_lo:[0,1] neg_hi:[0,1]")
    for k in range(4): A(f"v_pk_mul_f32 v[{96+2*k}:{96+2*k+1}], v[{S+2*k}:{S+2*k+1}], v[{S+2*k}:{S+2*k+1}]")
    for k in range(4, 16):
        q = k & 3
        A(f"v_pk_fma_f32 v[{96+2*q}:{96+2*q+1}], v[{S+2*k}:{S+2*k+1}], v[{S+2*k}:{S+2*k+1}], v[{96+2*q}:{96+2*q+1}]")
    A("v_pk_add_f32 v[96:97], v[96:97], v[98:99]"); A("v_pk_add_f32 v[100:101], v[100:101], v[102:103]")
    A("v_pk_add_f32 v[96:97], v[96:97], v[100:101]")
    A("v_add_f32 v14, v96, v97")
    for r in (8, 4, 2, 1): A(f"v_add_f32_dpp v14, v14, v14 row_ror:{r} {DPP}")
    A(f"v_mul_f32 v14, {hex(f2u(1/512))}, v14")
    A("v_cvt_pk_bf16_f32 v12, 0, v12")
    A("v_cvt_pk_bf16_f32 v14, 0, v14")
    A(f"v_add_f32 v14, {hex(f2u(1e-5))}, v14")
    A("v_cvt_pk_bf16_f32 v14, 0, v14")
    A("v_sqrt_f32 v14, v14")
    A("v_cvt_pk_bf16_f32 v14, 0, v14")
    A("v_rcp_f32 v14, v14")
    for k in range(16):
        A(f"v_pk_add_f32 v[{S+2*k}:{S+2*k+1}], v[{FX+2*k}:{FX+2*k+1}], v[12:13] op_sel_hi:[1,0] neg_lo:[0,1] neg_hi:[0,1]")
    for k in range(16): A(f"v_cvt_pk_bf16_f32 v{XR+k}, v{S+2*k}, v{S+2*k+1}")
    for k in range(16):
        A(f"v_lshlrev_b32 v{S+2*k}, 16, v{XR+k}")
        A(f"v_and_b32 v{S+2*k+1}, 0xffff0000, v{XR+k}")
    for k in range(16): A(f"v_pk_mul_f32 v[{S+2*k}:{S+2*k+1}], v[{S+2*k}:{S+2*k+1}], v[14:15] op_sel_hi:[1,0]")
    for k in range(16): A(f"v_cvt_pk_bf16_f32 v{XR+k}, v{S+2*k}, v{S+2*k+1}")
    A(f"v_mul_u32_u24 v5, {XNP}, v3"); A("v_lshl_add_u32 v5, v4, 4, v5")
    for t in range(4): A(f"ds_write_b128 v5, v[{XR+4*t}:{XR+4*t+3}] offset:{L_XN + 256*t}")
    A("v_and_b32 v11, 3, v0")
    A(f"v_mul_u32_u24 v5, {XNP}, v11"); A("v_lshl_add_u32 v5, v3, 4, v5")
    XF = 32
    WF = 96
    A("s_waitcnt lgkmcnt(0)")
    tags_from_epoch()
    for s in range(16): A(f"ds_read_b128 v[{XF+4*s}:{XF+4*s+3}], v5 offset:{L_XN + 64*s}")
    A("v_lshrrev_b32 v12, 2, v4"); A("v_lshl_add_u32 v12, v3, 3, v12")
    A("v_lshlrev_b32 v13, 5, v12"); A("v_lshl_add_u32 v13, v11, 3, v13")
    A("v_lshlrev_b32 v14, 4, v12"); A("v_and_b32 v15, 1, v0"); A("v_lshl_add_u32 v14, v15, 3, v14")
    A("v_bfe_u32 v15, v0, 1, 1"); A("v_lshl_add_u32 v14, v15, 13, v14")
    A("v_lshlrev_b32 v15, 7, v12"); A("v_lshl_add_u32 v15, v11, 3, v15")
    A(f"v_add_u32 v15, {L_DN}, v15")
    stamp()
    A("s_waitcnt vmcnt(25)")
    stamp()
    for s in range(16):
        for t2 in range(2):
            A(f"ds_read_b64_tr_b16 v[{WF+4*s+2*t2}:{WF+4*s+2*t2+1}], v13 offset:{L_WQ + s*1024 + t2*128}")
    A("s_waitcnt lgkmcnt(0)")
    for s in range(16):
        A(f"v_mfma_f32_16x16x32_bf16 v[16:19], v[{WF+4*s}:{WF+4*s+3}], v[{XF+4*s}:{XF+4*s+3}], " + ("0" if s == 0 else "v[16:19]"))
    A("s_lshl_b32 s72, s28, 13"); A("s_lshl_b32 s73, s29, 6"); A("s_add_u32 s72, s72, s73"); A(f"s_add_u32 s72, s72, {WS_QBOX}")
    A("v_lshlrev_b32 v5, 11, v4"); A("v_lshl_add_u32 v5, v3, 4, v5"); A("v_add_u32 v5, s72, v5")
    for r in range(4): A(f"v_cvt_pk_bf16_f32 v{16+r}, 0, v{16+r}")
    for r in range(4): A(f"v_or_b32 v{16+r}, {TAU[r]}, v{16+r}")
    A("s_mov_b32 exec_lo, 0x000f000f"); A("s_mov_b32 exec_hi, 0x000f000f")
    A("global_store_dwordx4 v5, v[16:19], s[26:27] sc1")
    A("s_mov_b64 exec, -1")
    A("s_waitcnt vmcnt(10)")
    for s in range(16):
        for t2 in range(2):
            A(f"ds_read_b64_tr_b16 v[{WF+4*s+2*t2}:{WF+4*s+2*t2+1}], v14 offset:{L_GA + s*512 + t2*64}")
    stamp()
    A("s_waitcnt lgkmcnt(0)")
    for s in range(16):
        A(f"v_mfma_f32_16x16x32_bf16 v[20:23], v[{WF+4*s}:{WF+4*s+3}], v[{XF+4*s}:{XF+4*s+3}], " + ("0" if s == 0 else "v[20:23]"))
    A("s_lshl_b32 s72, s54, 5"); A(f"s_add_u32 s72, s72, {WS_HBOX}")
    A("v_mul_u32_u24 v5, 7168, v4"); A("v_lshl_add_u32 v5, v3, 4, v5"); A("v_add_u32 v5, s72, v5")
    A(f"s_mov_b32 s61, {hex(NLOG2E)}")
    for r in range(4): A(f"v_cvt_pk_bf16_f32 v{20+r}, 0, v{20+r}")
    for r in range(4): A(f"v_permlane32_swap_b32 v{20+r}, v{24+r}")
    def silu(dst, src, n):
        for r in range(n): A(f"v_mul_f32 v{dst+r}, s61, v{src+r}")
        for r in range(n): A(f"v_exp_f32 v{dst+r}, v{dst+r}")
        for r in range(n): A(f"v_add_f32 v{dst+r}, 1.0, v{dst+r}")
        for r in range(n): A(f"v_rcp_f32 v{dst+r}, v{dst+r}")
        for r in range(n): A(f"v_mul_f32 v{dst+r}, v{dst+r}, v{src+r}")
        for r in range(n): A(f"v_cvt_pk_bf16_f32 v{dst+r}, 0, v{dst+r}")
    silu(28, 20, 4)
    for r in range(4): A(f"v_mul_f32 v{28+r}, v{28+r}, v{24+r}")
    for r in range(4): A(f"v_cvt_pk_bf16_f32 v{28+r}, 0, v{28+r}")
    for r in range(4): A(f"v_or_b32 v{28+r}, {TAU[r]}, v{28+r}")
    A("s_cmp_lt_u32 s29, 28")
    A("s_cbranch_scc0 L_noh")
    A("s_mov_b32 exec_lo, 0x000f000f"); A("s_mov_b32 exec_hi, 0")
    A("global_store_dwordx4 v5, v[28:31], s[26:27] sc1")
    A("s_mov_b64 exec, -1")
    A.label("L_noh")
    A("s_lshl_b32 s62, s28, 2"); A("s_add_u32 s62, s62, s30")
    A("s_lshl_b32 s72, s62, 11"); A(f"s_add_u32 s72, s72, {WS_QBOX}")
    A("v_bfe_u32 v5, v0, 2, 2"); A("v_lshlrev_b32 v5, 9, v5")
    A("v_lshl_add_u32 v5, v3, 7, v5"); A("v_lshl_add_u32 v5, v11, 5, v5"); A("v_add_u32 v5, s72, v5")
    A("s_mov_b32 s63, 0x07060302")
    poll([(32, 5, 0), (36, 5, 16)], 6, 7)
    for k in range(4): A(f"v_perm_b32 v{40+k}, v{33+2*k}, v{32+2*k}, s63")
    A("v_lshlrev_b32 v5, 4, v0")
    A(f"ds_write_b128 v5, v[40:43] offset:{L_QF}")
    stamp()
    A("s_cmp_lt_u32 s29, 28")
    A("s_cbranch_scc0 L_nodown")
    for nt in range(4):
        for s in range(2):
            for t2 in range(2):
                q = WF + 8*nt + 4*s + 2*t2
                A(f"ds_read_b64_tr_b16 v[{q}:{q+1}], v15 offset:{s*4096 + t2*512 + nt*32}")
    A("s_lshl_b32 s72, s55, 8"); A(f"s_add_u32 s72, s72, {WS_HBOX}")
    A("v_mul_u32_u24 v5, 7168, v11"); A("v_lshl_add_u32 v5, v3, 5, v5"); A("v_add_u32 v5, s72, v5")
    poll([(32, 5, 0), (36, 5, 16), (40, 5, 128), (44, 5, 144)], 6, 7)
    for k in range(8): A(f"v_perm_b32 v{48+k}, v{33+2*k}, v{32+2*k}, s63")
    A("s_waitcnt lgkmcnt(0)")
    for nt in range(4):
        for s in range(2):
            q = WF + 8*nt + 4*s
            A(f"v_mfma_f32_16x16x32_bf16 v[{64+4*nt}:{67+4*nt}], v[{q}:{q+3}], v[{48+4*s}:{51+4*s}], " + ("0" if s == 0 else f"v[{64+4*nt}:{67+4*nt}]"))
    A("s_lshl_b32 s72, s56, 13"); A("s_lshl_b32 s73, s55, 5"); A("s_add_u32 s72, s72, s73"); A(f"s_add_u32 s72, s72, {WS_FIN + 4096}")
    A("v_lshlrev_b32 v5, 16, v4"); A("v_lshrrev_b32 v6, 1, v3"); A("v_lshl_add_u32 v5, v6, 10, v5")
    A("v_and_b32 v6, 1, v3"); A("v_lshl_add_u32 v5, v6, 4, v5"); A("v_add_u32 v5, s72, v5")
    for k in range(16): A(f"v_and_or_b32 v{64+k}, v{64+k}, v2, {TAU[k&3]}")
    A("s_mov_b32 exec_lo, 0x000f000f"); A("s_mov_b32 exec_hi, 0x000f000f")
    for nt in range(4): A(f"global_store_dwordx4 v5, v[{64+4*nt}:{67+4*nt}], s[26:27] offset:{nt*2048-4096} sc1")
    A("s_mov_b64 exec, -1")
    A.label("L_nodown")
    A("s_waitcnt lgkmcnt(0)")
    stamp()
    A("s_barrier")
    A("v_and_b32 v5, 31, v0"); A("v_lshlrev_b32 v6, 3, v5")
    A("s_lshl_b32 s72, s62, 9"); A(f"s_add_u32 s72, s72, {WS_SBOX}")
    A("v_lshl_add_u32 v8, v5, 4, s72")
    A("s_lshl_b32 s73, s31, 4"); A("s_add_u32 s73, s73, s72")
    A("v_lshrrev_b32 v9, 3, v5"); A("v_lshl_add_u32 v9, v9, 7, s73")
    A(f"s_mov_b32 s64, {hex(CSC)}")
    A("s_barrier")
    A(f"ds_read_b64 v[16:17], v6 offset:{L_ST}")
    A("s_waitcnt lgkmcnt(0)")
    A("v_mov_b32 v20, v16")
    allred8("v_max_f32", 20)
    A(f"v_and_or_b32 v20, v20, v2, {T0}")
    A("v_sub_f32 v21, v16, v20"); A("v_mul_f32 v21, s64, v21"); A("v_exp_f32 v21, v21"); A("v_mul_f32 v21, v21, v17")
    allred8("v_add_f32", 21)
    A(f"v_and_or_b32 v21, v21, v2, {T1}")
    A(f"v_mov_b32 v22, {T2}"); A(f"v_mov_b32 v23, {T3}")
    A("s_mov_b32 exec_lo, 0x01010101"); A("s_mov_b32 exec_hi, 0")
    A("global_store_dwordx4 v9, v[20:23], s[26:27] sc1")
    A("s_mov_b64 exec, -1")
    for k in range(8): A(f"v_mov_b32 v{32+k}, 0")
    A("s_lshl_b32 s72, s2, 10"); A(f"s_add_u32 s72, s72, {WS_FIN}")
    A("v_lshl_add_u32 v9, v0, 5, s72")
    A("s_mov_b32 exec_lo, 0x0fffffff"); A("s_mov_b32 exec_hi, 0")
    poll([(32, 9, 0), (36, 9, 16)], 6, 7)
    A("s_mov_b64 exec, -1")
    reduce64x8(32)
    for r in range(2): A(f"v_cvt_pk_bf16_f32 v{32+r}, 0, v{32+r}")
    silu(40, 32, 2)
    A("v_lshlrev_b32 v42, 16, v10"); A("v_and_b32 v43, 0xffff0000, v10")
    A("v_lshlrev_b32 v9, 4, v3")
    A(f"ds_write_b128 v9, v[40:43] offset:{L_GX}")
    poll([(24, 8, 0)], 6, 7)
    A("v_mov_b32 v20, v24")
    allred8("v_max_f32", 20)
    A("v_sub_f32 v21, v24, v20"); A("v_mul_f32 v21, s64, v21"); A("v_exp_f32 v21, v21"); A("v_mul_f32 v21, v21, v25")
    allred8("v_add_f32", 21)
    A("v_sub_f32 v22, v16, v20"); A("v_mul_f32 v22, s64, v22"); A("v_exp_f32 v22, v22")
    A("v_rcp_f32 v21, v21")
    A("v_mul_f32 v22, v22, v21")
    A("v_lshlrev_b32 v5, 2, v5")
    A(f"ds_write_b32 v5, v22 offset:{L_F}")
    A("s_waitcnt lgkmcnt(0)")
    stamp()
    dump_stamps(6, 7)
    A("s_endpgm")

    A.raw(".p2align 6")
    A.label("L_kv"); A.reset()
    nst[0] = 1
    KR, VR = 32, 96
    DT = 16
    QF = 12
    A("s_sub_u32 s54, s3, 1")
    A("v_and_b32 v11, 3, v0")
    A("v_bfe_u32 v10, v0, 2, 2")
    A("v_lshlrev_b32 v4, 4, v11"); A("v_lshl_add_u32 v4, v10, 8, v4"); A("v_lshl_add_u32 v4, v3, 6, v4")
    A("v_lshlrev_b32 v5, 4, v0")
    A("s_lshl_b32 s55, s30, 3"); A("s_add_u32 s55, s55, s28"); A("s_lshl_b32 s55, s55, 22")
    A("s_lshl_b32 s72, s31, 17"); A("s_add_u32 s55, s55, s72"); A("s_add_u32 s55, s55, 0x300000")
    A("s_lshl_b32 s72, s31, 12"); A("s_lshl_b32 s73, s54, 10"); A("s_add_u32 s74, s72, s73")
    def koff(i):
        A(f"s_add_u32 s{56+i}, s74, {i*8192}"); A(f"s_and_b32 s{56+i}, s{56+i}, 0x1ffff"); A(f"s_add_u32 s{56+i}, s{56+i}, s55")
    for i in range(cap): koff(i)
    A("s_waitcnt lgkmcnt(0)")
    stamp()
    srd(32, 6, "0x8000000"); srd(36, 8, "0x8000000")
    issued = []
    def ldK(i):
        A(f"buffer_load_dwordx4 v[{KR+4*i}:{KR+4*i+3}], v4, s[32:35], s{56+i} offen {kvflags}"); issued.append(("K", i))
    def ldV(i):
        A(f"buffer_load_dwordx4 v[{VR+4*i}:{VR+4*i+3}], v5, s[36:39], s{56+i} offen {kvflags}"); issued.append(("V", i))
    def waitfor(tag):
        n = len(issued) - 1 - issued.index(tag)
        A(f"s_waitcnt vmcnt({n})")
    def ldWO():
        for t in range(2):
            A(f"s_add_u32 s72, s75, {t*4096}")
            A(f"s_add_u32 m0, s76, {t*1024}")
            A(f"buffer_load_dwordx4 v6, s[40:43], s72 offen {wflags} lds"); issued.append(("W", t))
    for i in range(cap): ldK(i)
    A("s_load_dword s52, s[26:27], 0")
    srd(40, 12, "0x400000")
    A("s_lshr_b32 s77, s29, 2")
    A("s_and_b32 s78, s29, 3")
    A("s_lshl_b32 s75, s28, 19"); A("s_lshl_b32 s72, s77, 16"); A("s_add_u32 s75, s75, s72")
    A("s_lshl_b32 s72, s54, 13"); A("s_add_u32 s75, s75, s72"); A("s_lshl_b32 s72, s78, 8"); A("s_add_u32 s75, s75, s72")
    A("s_lshl_b32 s76, s54, 11"); A(f"s_add_u32 s76, s76, {L_WO}")
    A("s_and_b32 s72, s54, 1"); A("s_lshl_b32 s72, s72, 3")
    A("v_lshlrev_b32 v6, 1, v3"); A("v_or_b32 v6, s72, v6")
    A("v_and_b32 v7, 15, v0"); A("v_xor_b32 v6, v6, v7"); A("v_lshlrev_b32 v6, 4, v6"); A("v_lshl_add_u32 v6, v3, 10, v6")
    A("v_and_b32 v7, 1, v0"); A("v_lshlrev_b32 v7, 4, v7"); A("v_mov_b32 v8, 0xffff"); A("v_lshlrev_b32 v7, v7, v8")
    A("v_cmp_gt_u32 vcc, 2, v11")
    A("v_cndmask_b32 v8, 0, v7, vcc")
    A("v_cndmask_b32 v9, v7, 0, vcc")
    A(f"s_mov_b32 s79, {hex(CSC)}")
    seq = [("K", i) for i in range(cap, 16)] + [("V", i) for i in range(nv_early)]
    if wo_pos == "early": seq = seq[:4] + [("W", 0)] + seq[4:]
    for kind, i in seq:
        if kind == "K": koff(i)
        if kind == "W": ldWO(); continue
        A(f"s_waitcnt vmcnt({cap-1})")
        (ldK if kind == "K" else ldV)(i)
    waitfor(("K", 15))
    A("s_waitcnt lgkmcnt(0)")
    tags_from_epoch()
    stamp()
    A("s_barrier")
    A(f"ds_read_b128 v[{QF}:{QF+3}], v5 offset:{L_QF}")
    A("s_waitcnt lgkmcnt(0)")
    stamp()
    nv = nv_early
    for gq in range(4):
        for t in range(4):
            i = 4*gq + t
            A(f"v_mfma_f32_16x16x32_bf16 v[{DT+4*t}:{DT+4*t+3}], v[{KR+4*i}:{KR+4*i+3}], v[{QF}:{QF+3}], 0")
        if nv < nv_early + nv_mid and nv < 16:
            ldV(nv); nv += 1
        for c in range(4):
            for t in range(4):
                i = 4*gq + t
                z = KR + 4*i
                if c == 0: A(f"v_mov_b32_dpp v{z}, v{DT+4*t} quad_perm:[0,0,0,0] {DPP}")
                else: A(f"v_add_f32_dpp v{z}, v{DT+4*t+c}, v{z} quad_perm:[{c},{c},{c},{c}] {DPP}")
    while nv < nv_early + nv_mid and nv < 16:
        ldV(nv); nv += 1
    Z = lambda i: KR + 4*i
    A(f"v_max3_f32 v16, v{Z(0)}, v{Z(1)}, v{Z(2)}"); A(f"v_max3_f32 v17, v{Z(3)}, v{Z(4)}, v{Z(5)}")
    A(f"v_max3_f32 v18, v{Z(6)}, v{Z(7)}, v{Z(8)}"); A(f"v_max3_f32 v19, v{Z(9)}, v{Z(10)}, v{Z(11)}")
    A(f"v_max3_f32 v16, v16, v{Z(12)}, v{Z(13)}"); A(f"v_max3_f32 v17, v17, v{Z(14)}, v{Z(15)}")
    A("v_max3_f32 v16, v16, v17, v18"); A("v_max_f32 v16, v16, v19")
    allred_rows("v_max_f32", 16, 18)
    A("v_mul_f32 v18, s79, v16")
    for i in range(16): A(f"v_fma_f32 v{Z(i)}, v{Z(i)}, s79, -v18")
    for i in range(16): A(f"v_exp_f32 v{Z(i)}, v{Z(i)}")
    for i in range(16): A(f"v_cvt_pk_bf16_f32 v{Z(i)+1}, v{Z(i)}, v{Z(i)}")
    for i in range(16):
        A(f"v_and_b32 v{Z(i)+2}, v{Z(i)+1}, v8"); A(f"v_and_b32 v{Z(i)+3}, v{Z(i)+1}, v9")
    for k in range(4): A(f"v_add_f32 v{20+k}, v{Z(k)}, v{Z(k+4)}")
    for k in range(4): A(f"v_add_f32 v{20+k}, v{20+k}, v{Z(k+8)}")
    for k in range(4): A(f"v_add_f32 v{20+k}, v{20+k}, v{Z(k+12)}")
    A("v_add_f32 v20, v20, v21"); A("v_add_f32 v22, v22, v23"); A("v_add_f32 v17, v20, v22")
    allred_rows("v_add_f32", 17, 18)
    A("s_lshl_b32 s72, s54, 3")
    A("v_lshl_add_u32 v1, v10, 6, s72")
    A(f"ds_write_b64 v1, v[16:17] offset:{L_ST}")
    A("s_waitcnt lgkmcnt(0)")
    A("s_barrier")
    stamp()
    O0, O1 = 16, 20
    A(f"s_mul_i32 s72, s54, {ORP}"); A("v_add_u32 v24, s72, v5")
    A(f"v_mul_u32_u24 v25, {2*ORP}, v11")
    A("v_bfe_u32 v7, v0, 2, 1"); A("v_lshl_add_u32 v25, v7, 10, v25")
    A("v_lshrrev_b32 v7, 3, v0"); A("v_lshl_add_u32 v25, v7, 4, v25")
    A("s_lshl_b32 s72, s54, 7"); A("v_add_u32 v25, s72, v25")
    A("s_lshr_b32 s73, s54, 1")
    A("s_lshl_b32 s72, s73, 5"); A("v_lshl_add_u32 v26, v11, 3, s72")
    A("s_lshl_b32 s44, s28, 2")
    A("s_add_u32 s72, s44, s30"); A("s_lshl_b32 s72, s72, 3"); A("s_add_u32 s72, s72, s31"); A("s_lshl_b32 s72, s72, 11")
    A("s_lshl_b32 s45, s54, 8"); A("s_add_u32 s72, s72, s45"); A(f"s_add_u32 s72, s72, {WS_OBOX}")
    A("v_lshrrev_b32 v7, 2, v0"); A("v_lshl_add_u32 v27, v7, 4, s72")
    A("s_add_u32 s72, s44, s73"); A("s_lshl_b32 s72, s72, 14"); A("s_lshl_b32 s45, s77, 8"); A("s_add_u32 s72, s72, s45")
    A("s_and_b32 s45, s54, 1"); A("s_lshl_b32 s45, s45, 7"); A("s_add_u32 s72, s72, s45"); A(f"s_add_u32 s72, s72, {WS_OBOX}")
    A("v_lshrrev_b32 v7, 3, v0"); A("v_lshlrev_b32 v28, 11, v7"); A("v_and_b32 v7, 7, v0"); A("v_lshl_add_u32 v28, v7, 4, v28"); A("v_add_u32 v28, s72, v28")
    A(f"s_mul_i32 s72, s73, {OBP}"); A("s_lshr_b32 s45, s45, 1"); A("s_add_u32 s72, s72, s45")
    A("v_lshlrev_b32 v29, 3, v7"); A("v_lshl_add_u32 v29, v3, 1, v29"); A("v_add_u32 v29, s72, v29")
    A(f"v_mul_u32_u24 v30, {OBP}, v11"); A("v_lshl_add_u32 v30, v3, 4, v30")
    A("v_and_b32 v7, 1, v3"); A("v_lshl_or_b32 v7, v7, 2, v10"); A("v_xor_b32 v7, s54, v7"); A("v_lshlrev_b32 v31, 5, v7")
    A("v_lshl_add_u32 v7, v3, 3, v10"); A("v_lshl_add_u32 v31, v7, 8, v31"); A("v_lshl_add_u32 v31, v11, 3, v31"); A(f"v_add_u32 v31, {L_WO}, v31")
    A("s_lshl_b32 s72, s78, 4"); A("s_lshl_b32 s45, s54, 1"); A("s_add_u32 s72, s72, s45"); A("s_lshl_b32 s72, s72, 11")
    A("s_lshl_b32 s45, s28, 3"); A("s_add_u32 s45, s45, s77"); A("s_lshl_b32 s45, s45, 5"); A("s_add_u32 s72, s72, s45"); A(f"s_add_u32 s72, s72, {WS_SIN}")
    A("v_lshlrev_b32 v1, 17, v11"); A("v_lshrrev_b32 v7, 1, v3"); A("v_lshl_add_u32 v1, v7, 11, v1")
    A("v_and_b32 v7, 1, v3"); A("v_lshl_add_u32 v1, v7, 4, v1"); A("v_add_u32 v1, s72, v1")
    A("s_lshl_b32 s72, s2, 11"); A(f"s_add_u32 s72, s72, {WS_SIN}"); A("v_lshl_add_u32 v4, v0, 5, s72")
    wo_done = wo_pos == "early"
    for i in range(16):
        waitfor(("V", i))
        A(f"v_mfma_f32_16x16x16_bf16 v[{O0}:{O0+3}], v[{Z(i)+2}:{Z(i)+3}], v[{VR+4*i}:{VR+4*i+1}], " + ("0" if i == 0 else f"v[{O0}:{O0+3}]"))
        A(f"v_mfma_f32_16x16x16_bf16 v[{O1}:{O1+3}], v[{Z(i)+2}:{Z(i)+3}], v[{VR+4*i+2}:{VR+4*i+3}], " + ("0" if i == 0 else f"v[{O1}:{O1+3}]"))
        if nv < 16:
            ldV(nv); nv += 1
        elif not wo_done:
            ldWO(); wo_done = True
    stamp()
    A(f"ds_write_b128 v24, v[{O0}:{O0+3}] offset:{L_ORED}")
    A(f"ds_write_b128 v24, v[{O1}:{O1+3}] offset:{L_ORED+1024}")
    A("s_waitcnt lgkmcnt(0)")
    A("s_barrier")
    A(f"ds_read_b64 v[12:13], v26 offset:{L_F}")
    A(f"ds_read_b128 v[32:35], v25 offset:{L_ORED}")
    A(f"ds_read_b128 v[36:39], v25 offset:{L_ORED+ORP}")
    A("s_waitcnt lgkmcnt(1)")
    for k in range(4): A(f"v_mul_f32 v{32+k}, v{32+k}, v12")
    A("s_waitcnt lgkmcnt(0)")
    for k in range(4): A(f"v_fmac_f32 v{32+k}, v{36+k}, v13")
    for qp in ("[1,0,3,2]", "[2,3,0,1]"):
        for k in range(4): A(f"v_add_f32_dpp v{32+k}, v{32+k}, v{32+k} quad_perm:{qp} {DPP}")
    for k in range(4): A(f"v_and_or_b32 v{32+k}, v{32+k}, v2, {TAU[k]}")
    A("s_mov_b32 exec_lo, 0x11111111"); A("s_mov_b32 exec_hi, 0x11111111")
    A("global_store_dwordx4 v27, v[32:35], s[26:27] sc1")
    A("s_mov_b64 exec, -1")
    stamp()
    poll([(40, 28, 0)], 6, 7)
    stamp()
    A("v_permlane32_swap_b32 v40, v42"); A("v_permlane32_swap_b32 v41, v43")
    A("v_add_f32 v40, v40, v42"); A("v_add_f32 v41, v41, v43")
    A("v_permlane16_swap_b32 v40, v41")
    A("v_add_f32 v40, v40, v41")
    A(f"v_add_f32_dpp v40, v40, v40 row_ror:8 {DPP}")
    A("v_cvt_pk_bf16_f32 v40, v40, v40")
    A(f"ds_write_b16 v29, v40 offset:{L_OB}")
    A("s_waitcnt lgkmcnt(0)")
    A("s_barrier")
    for s in range(2):
        A(f"ds_read_b128 v[{48+4*s}:{51+4*s}], v30 offset:{L_OB + 64*s}")
        for t2 in range(2):
            A(f"ds_read_b64_tr_b16 v[{56+4*s+2*t2}:{57+4*s+2*t2}], v31 offset:{s*8192 + t2*1024}")
    A("v_lshlrev_b32 v7, 4, v3")
    A(f"ds_read_b128 v[64:67], v7 offset:{L_GX}")
    A("s_waitcnt lgkmcnt(4)")
    A("v_mfma_f32_16x16x32_bf16 v[44:47], v[56:59], v[48:51], 0")
    A("s_waitcnt lgkmcnt(1)")
    A("v_mfma_f32_16x16x32_bf16 v[44:47], v[60:63], v[52:55], v[44:47]")
    A("s_mov_b32 exec_lo, 0x000f000f"); A("s_mov_b32 exec_hi, 0x000f000f")
    for k in range(4): A(f"v_and_or_b32 v{44+k}, v{44+k}, v2, {TAU[k]}")
    A("global_store_dwordx4 v1, v[44:47], s[26:27] sc1")
    A("s_mov_b64 exec, -1")
    stamp()
    A("s_cmp_lg_u32 s54, 0")
    A("s_cbranch_scc1 L_kvdone")
    A("s_lshl_b32 s72, s2, 4")
    A("v_lshl_add_u32 v5, v3, 2, s72")
    poll([(32, 4, 0), (36, 4, 16)], 6, 7)
    stamp()
    reduce64x8(32)
    A("s_waitcnt lgkmcnt(0)")
    for r in range(2): A(f"v_cvt_pk_bf16_f32 v{32+r}, 0, v{32+r}")
    for r in range(2): A(f"v_mul_f32 v{32+r}, v{32+r}, v{64+r}")
    for r in range(2): A(f"v_cvt_pk_bf16_f32 v{32+r}, 0, v{32+r}")
    for r in range(2): A(f"v_add_f32 v{32+r}, v{32+r}, v{66+r}")
    A("v_cvt_pk_bf16_f32 v32, v32, v33")
    A("s_mov_b32 exec_lo, 0x00010001"); A("s_mov_b32 exec_hi, 0x00010001")
    A("global_store_dword v5, v32, s[22:23]")
    A("s_cmp_lg_u32 s2, 0")
    A("s_cbranch_scc1 L_kvdone")
    A("s_mov_b64 exec, 1")
    A("v_mov_b32 v5, 0"); A("v_mov_b32 v6, s52")
    A("global_store_dword v5, v6, s[26:27] sc1")
    A.label("L_kvdone")
    if stamps:
        A("s_waitcnt vmcnt(0)")
        stamp()
        dump_stamps(6, 7)
    A.label("L_end")
    A("s_endpgm")
    A.raw('.section .rodata,"a"'); A.raw(".p2align 6"); A.raw(f".amdhsa_kernel {NAME}_kernel")
    A.raw("  .amdhsa_next_free_vgpr 160"); A.raw("  .amdhsa_next_free_sgpr 102"); A.raw("  .amdhsa_accum_offset 160")
    A.raw("  .amdhsa_group_segment_fixed_size 0"); A.raw("  .amdhsa_kernarg_size 96"); A.raw("  .amdhsa_user_sgpr_count 2")
    A.raw("  .amdhsa_user_sgpr_kernarg_segment_ptr 1"); A.raw("  .amdhsa_system_sgpr_workgroup_id_x 1"); A.raw(".end_amdhsa_kernel")
    return A.text()

if __name__ == "__main__":
    out = sys.argv[1] if len(sys.argv) > 1 else f"cdna_kernels/{NAME}.s"
    kw = {}
    for a in sys.argv[2:]:
        k, v = a.split("=")
        try: v = int(v, 0)
        except ValueError: pass
        kw[k] = v
    open(out, "w").write(gen(**kw))
```

```python
import sys, struct, math
sys.path.insert(0, "work")
from asmlib import Asm

NAME = "recurrent_scan__sliding_block_cached__swiglu_ffn__decode"

def f2u(x): return struct.unpack("<I", struct.pack("<f", x))[0]

WS_E    = 0x0
WS_HBOX = 0x20000
WS_SBOX = 0x28000
WS_QBOX = 0x40000
WS_OBOX = 0x80000
WS_SIN  = 0x100000
WS_FIN  = 0x140000
WS_XBOX = 0x1000
WS_GBOX = 0x200000
WS_STAMP = 0x400000
L_XN, XNP = 0x0, 320
L_FLAG = 0x1000
L_QF = 0x1100
L_ST = 0x1500
L_F  = 0x1600
L_GX = 0x1700
L_OB, OBP = 0x1900, 320
L_ORED, ORP = 0x2000, 2080
L_WQ = 0x6400
L_GA = 0xA400
L_UP = 0xC400
L_DN = 0xE400
L_WO = 0x10400
L_TOTAL = 0x14400
NW = 10

DPP = "row_mask:0xf bank_mask:0xf"

def gen(stamps=False, cap=3, wflags="nt", kvflags="nt", nv_early=3, nv_mid=3, wo_pos="end", spin=1 << 20,
        psleep=2, hsleep=4, cap2=None, pflags='sc1', xtries=24, qdelay=24, fdelay=16, force_slow=False):
    A = Asm()
    A.raw(f"; @launch grid=(256,1,1) block=({64*NW},1,1) lds={L_TOTAL}")
    A.raw('.amdgcn_target "amdgcn-amd-amdhsa--gfx950"')
    A.raw(".text"); A.raw(f".globl {NAME}_kernel"); A.raw(".p2align 8"); A.raw(f".type {NAME}_kernel,@function")
    A.label(f"{NAME}_kernel")
    nst = [0]
    def stamp():
        if stamps:
            k = nst[0]; nst[0] += 1
            assert k < 11
            A(f"s_memrealtime s[{80+2*k}:{81+2*k}]")
    def dump_stamps(vtmp, vaddr):
        if not stamps: return
        A("s_waitcnt lgkmcnt(0)")
        A("s_mov_b64 exec, 1")
        A(f"s_mul_i32 s72, s2, {NW}"); A("s_add_u32 s72, s72, s3"); A("s_lshl_b32 s72, s72, 6"); A(f"s_add_u32 s72, s72, {WS_STAMP}")
        A(f"v_mov_b32 v{vaddr}, s72")
        for k in range(nst[0]):
            A(f"v_mov_b32 v{vtmp}, s{80+2*k}")
            A(f"global_store_dword v{vaddr}, v{vtmp}, s[26:27] offset:{4*k}")
    T0, T1, T2, T3 = "s48", "s49", "s50", "s51"
    TAU = [T0, T1, T2, T3]
    def tags_from_epoch():
        A("s_add_u32 s52, s52, 1")
        A("s_and_b32 s48, s52, 0xff")
        A("s_xor_b32 s49, s48, 0x55"); A("s_xor_b32 s50, s48, 0xaa"); A("s_xor_b32 s51, s48, 0xff")
    pollid = [0]
    def poll(loads, acc, acc2, sleep, half_last=False):
        n = pollid[0]; pollid[0] += 1
        A(f"s_branch L_poll{n}")
        A.label(f"L_pollr{n}")
        if sleep: A(f"s_sleep {sleep}")
        A("s_add_u32 s53, s53, 1")
        A(f"s_cmp_gt_u32 s53, {spin}")
        A("s_cbranch_scc1 L_end")
        A.label(f"L_poll{n}")
        for q, (d, va, off) in enumerate(loads):
            if half_last and q == 0:
                A("s_mov_b32 s72, exec_hi"); A("s_mov_b32 exec_hi, 0")
            A(f"global_load_dwordx4 v[{d}:{d+3}], v{va}, s[26:27] offset:{off} {pflags}")
            if half_last and q == 0:
                A("s_mov_b32 exec_hi, s72")
        first = True
        for q, (d, va, off) in enumerate(loads):
            A(f"s_waitcnt vmcnt({len(loads)-1-q})")
            if first:
                A(f"v_xor_b32 v{acc}, {T0}, v{d}")
                A(f"v_xor_b32 v{acc2}, {T1}, v{d+1}")
                first = False
            else:
                A(f"v_bitop3_b32 v{acc}, v{acc}, v{d}, {T0} bitop3:0xf6")
                A(f"v_bitop3_b32 v{acc2}, v{acc2}, v{d+1}, {T1} bitop3:0xf6")
            A(f"v_bitop3_b32 v{acc}, v{acc}, v{d+2}, {T2} bitop3:0xf6")
            A(f"v_bitop3_b32 v{acc2}, v{acc2}, v{d+3}, {T3} bitop3:0xf6")
        A(f"v_or_b32 v{acc}, v{acc}, v{acc2}")
        A(f"v_and_b32 v{acc}, 0xff, v{acc}")
        A(f"v_cmp_ne_u32 vcc, 0, v{acc}")
        A("s_and_b64 exec, exec, vcc")
        A(f"s_cbranch_scc1 L_pollr{n}")
        A("s_mov_b64 exec, -1")
    def publish(stores):
        n = pollid[0]; pollid[0] += 1
        A("s_cmp_eq_u32 s78, 1")
        A(f"s_cbranch_scc1 L_pf{n}")
        for va, d, off in stores: A(f"global_store_dwordx4 v{va}, v[{d}:{d+3}], s[26:27] offset:{off} sc1")
        A(f"s_branch L_pd{n}")
        A.label(f"L_pf{n}")
        for va, d, off in stores: A(f"global_store_dwordx4 v{va}, v[{d}:{d+3}], s[26:27] offset:{off}")
        A.label(f"L_pd{n}")
    def xcc_wait():
        n = pollid[0]; pollid[0] += 1
        A("s_mov_b32 exec_hi, 0")
        A("s_mov_b32 s78, 2")
        A("s_mov_b32 s67, 0")
        A(f"s_branch L_xc{n}")
        A.label(f"L_xr{n}")
        A("s_add_u32 s67, s67, 1")
        A(f"s_cmp_gt_u32 s67, {xtries}")
        A(f"s_cbranch_scc1 L_xe{n}")
        A("s_sleep 2")
        A(f"global_load_dword v14, v13, s[26:27] {pflags}")
        A.label(f"L_xc{n}")
        A("s_waitcnt vmcnt(0)")
        A("v_cmp_ne_u32 vcc, s66, v14")
        A(f"s_cbranch_vccnz L_xr{n}")
        if not force_slow: A("s_mov_b32 s78, 1")
        A.label(f"L_xe{n}")
        A("s_mov_b64 exec, -1")
    def reduce_f(a):
        for k in range(2): A(f"v_pk_add_f32 v[{a+2*k}:{a+2*k+1}], v[{a+2*k}:{a+2*k+1}], v[{a+4+2*k}:{a+4+2*k+1}]")
        for k in range(2): A(f"v_pk_add_f32 v[{a+8+2*k}:{a+8+2*k+1}], v[{a+8+2*k}:{a+8+2*k+1}], v[{a+12+2*k}:{a+12+2*k+1}]")
        for k in range(2): A(f"v_pk_add_f32 v[{a+2*k}:{a+2*k+1}], v[{a+2*k}:{a+2*k+1}], v[{a+8+2*k}:{a+8+2*k+1}]")
        A(f"v_permlane32_swap_b32 v{a}, v{a+2}"); A(f"v_permlane32_swap_b32 v{a+1}, v{a+3}")
        A(f"v_add_f32 v{a}, v{a}, v{a+2}"); A(f"v_add_f32 v{a+1}, v{a+1}, v{a+3}")
        A(f"v_permlane16_swap_b32 v{a}, v{a+1}")
        A(f"v_add_f32 v{a}, v{a}, v{a+1}")
        A(f"v_add_f32_dpp v{a}, v{a}, v{a} row_ror:8 {DPP}")
    def out_index(v, t):
        A(f"v_bfe_u32 v{v}, v0, 1, 2"); A(f"v_lshlrev_b32 v{v}, 10, v{v}")
        A(f"v_and_b32 v{t}, 1, v0"); A(f"v_lshl_add_u32 v{v}, v{t}, 3, v{v}"); A(f"v_lshl_add_u32 v{v}, v3, 1, v{v}")
        A("s_lshl_b32 s72, s2, 4"); A(f"v_add_u32 v{v}, s72, v{v}")
    def ldswait(vaddr, off, val, vt):
        n = pollid[0]; pollid[0] += 1
        A.label(f"L_lw{n}")
        A(f"ds_read_b32 v{vt}, v{vaddr} offset:{off}")
        A("s_add_u32 s53, s53, 1")
        A(f"s_cmp_gt_u32 s53, {spin}")
        A("s_cbranch_scc1 L_end")
        A("s_waitcnt lgkmcnt(0)")
        A(f"v_cmp_eq_u32 vcc, {val}, v{vt}" if val else f"v_cmp_ne_u32 vcc, 0, v{vt}")
        A(f"s_cbranch_vccnz L_lwd{n}")
        A("s_sleep 1")
        A(f"s_branch L_lw{n}")
        A.label(f"L_lwd{n}")
    def srd(s, lo, size):
        A(f"s_mov_b32 s{s}, s{lo}"); A(f"s_mov_b32 s{s+1}, s{lo+1}")
        A(f"s_mov_b32 s{s+2}, {size}"); A(f"s_mov_b32 s{s+3}, 0x20000")
    def allred8(op, v):
        A(f"{op}_dpp v{v}, v{v}, v{v} quad_perm:[1,0,3,2] {DPP}")
        A(f"{op}_dpp v{v}, v{v}, v{v} quad_perm:[2,3,0,1] {DPP}")
        A(f"{op}_dpp v{v}, v{v}, v{v} row_half_mirror {DPP}")
    def allred_rows(op, v, t):
        A(f"v_mov_b32 v{t}, v{v}"); A(f"v_permlane16_swap_b32 v{v}, v{t}"); A(f"{op} v{v}, v{v}, v{t}")
        A(f"v_mov_b32 v{t}, v{v}"); A(f"v_permlane32_swap_b32 v{v}, v{t}"); A(f"{op} v{v}, v{v}, v{t}")
    def reduce64x8(a):
        for k in range(4): A(f"v_permlane32_swap_b32 v{a+k}, v{a+4+k}")
        for k in range(4): A(f"v_add_f32 v{a+k}, v{a+k}, v{a+4+k}")
        for k in range(2): A(f"v_permlane16_swap_b32 v{a+k}, v{a+2+k}")
        for k in range(2): A(f"v_add_f32 v{a+k}, v{a+k}, v{a+2+k}")
        for r in (8, 4, 2, 1):
            for k in range(2): A(f"v_add_f32_dpp v{a+k}, v{a+k}, v{a+k} row_ror:{r} {DPP}")
    def dma(vaddr, srdn, sbase, step, n, ldsbase, flags):
        for t in range(n):
            A(f"s_add_u32 s72, s{sbase}, {t*step}")
            A(f"s_mov_b32 m0, {ldsbase + t*1024}")
            A(f"buffer_load_dwordx4 v{vaddr}, s[{srdn}:{srdn+3}], s72 offen {flags} lds")
    def silu(dst, src, n):
        for r in range(n): A(f"v_mul_f32 v{dst+r}, s61, v{src+r}")
        for r in range(n): A(f"v_exp_f32 v{dst+r}, v{dst+r}")
        for r in range(n): A(f"v_add_f32 v{dst+r}, 1.0, v{dst+r}")
        for r in range(n): A(f"v_rcp_f32 v{dst+r}, v{dst+r}")
        for r in range(n): A(f"v_mul_f32 v{dst+r}, v{dst+r}, v{src+r}")
        for r in range(n): A(f"v_cvt_pk_bf16_f32 v{dst+r}, 0, v{dst+r}")
    def tile_reads(base, nks, dst):
        for nt in range(4):
            for s in range(nks):
                for t2 in range(2):
                    q = dst + 4*(nt*nks + s) + 2*t2
                    A(f"ds_read_b64_tr_b16 v[{q}:{q+1}], v15 offset:{base - L_WQ + s*4096 + t2*512 + nt*32}")
    def tile_mfma(acc, nks, wf, xf):
        for s in range(nks):
            for nt in range(4):
                q = wf + 4*(nt*nks + s)
                A(f"v_mfma_f32_16x16x32_bf16 v[{acc+4*nt}:{acc+4*nt+3}], v[{q}:{q+3}], v[{xf+4*s}:{xf+4*s+3}], " + ("0" if s == 0 else f"v[{acc+4*nt}:{acc+4*nt+3}]"))
    def ex16():
        A("s_mov_b32 exec_lo, 0x000f000f"); A("s_mov_b32 exec_hi, 0x000f000f")
    CSC = f2u(math.log2(math.e) / math.sqrt(128.0))
    NLOG2E = f2u(-math.log2(math.e))

    stamp()
    A("s_cmp_ge_u32 s2, 256")
    A("s_cbranch_scc1 L_end")
    A("s_load_dwordx16 s[4:19], s[0:1], 0")
    A("s_load_dwordx8 s[20:27], s[0:1], 64")
    A("v_lshrrev_b32 v1, 6, v0")
    A("v_and_b32 v0, 63, v0")
    A("v_readfirstlane_b32 s3, v1")
    A("s_and_b32 s28, s2, 7")
    A("s_lshr_b32 s29, s2, 3")
    A("s_lshr_b32 s30, s2, 6")
    A("s_and_b32 s31, s29, 7")
    A("s_mov_b32 s53, 0")
    A("v_mov_b32 v2, 0xffffff00")
    A("v_lshrrev_b32 v3, 4, v0")
    A("v_and_b32 v11, 3, v0")
    A("s_cmp_gt_u32 s3, 1")
    A("s_cbranch_scc1 L_kv")

    A("s_setprio 3")
    A("v_and_b32 v4, 15, v0")
    A("s_lshr_b32 s55, s29, 2")
    A("s_and_b32 s54, s29, 3"); A("s_lshl_b32 s54, s54, 3"); A("s_add_u32 s54, s54, s28")
    A("v_lshlrev_b32 v5, 4, v4"); A("v_lshl_add_u32 v5, v3, 10, v5")
    for t in range(4):
        A(f"s_add_u32 s72, s30, {t}"); A("s_and_b32 s72, s72, 3"); A("s_lshl_b32 s72, s72, 8")
        A(f"v_add_u32 v{12+t}, s72, v5")
    A("v_lshrrev_b32 v9, 3, v0"); A("v_and_b32 v10, 7, v0"); A("v_lshlrev_b32 v10, 4, v10")
    A("v_lshl_add_u32 v6, v9, 13, v10")
    A("v_mul_u32_u24 v7, 3584, v9"); A("v_add_u32 v7, v7, v10")
    A("v_lshl_add_u32 v8, v9, 10, v10")
    A("s_lshl_b32 s57, s30, 20"); A("s_lshl_b32 s72, s28, 10"); A("s_add_u32 s57, s57, s72")
    A("s_lshl_b32 s72, s31, 7"); A("s_add_u32 s57, s57, s72")
    A(f"s_mul_i32 s58, s55, {64*3584}"); A("s_lshl_b32 s72, s54, 7"); A("s_add_u32 s58, s58, s72")
    A("s_lshl_b32 s59, s54, 16"); A("s_lshl_b32 s72, s55, 7"); A("s_add_u32 s59, s59, s72")
    A("s_cmp_lt_u32 s54, 28")
    A("s_cselect_b32 s60, 0x1c0000, 0")
    A("v_mov_b32 v16, 0"); A("v_mov_b32 v17, 0"); A(f"v_mov_b32 v1, {L_FLAG}")
    A("ds_write_b64 v1, v[16:17]")
    A("s_waitcnt lgkmcnt(0)")
    stamp()
    XR = 16
    for t in range(4):
        A(f"global_load_dwordx4 v[{XR+4*t}:{XR+4*t+3}], v{12+t}, s[4:5]")
    A("s_load_dword s52, s[26:27], 0")
    srd(32, 10, "0x400000"); srd(36, 16, "s60"); srd(40, 18, "s60"); srd(44, 20, "s60")
    A("s_cmp_eq_u32 s3, 0")
    A("s_cbranch_scc0 L_dmaf")
    dma(6, 32, 57, 8 * 8192, 16, L_WQ, wflags)
    A("s_branch L_dmad")
    A.label("L_dmaf")
    dma(7, 36, 58, 8 * 3584, 8, L_GA, wflags)
    dma(7, 40, 58, 8 * 3584, 8, L_UP, wflags)
    A.label("L_dmad")
    A("s_barrier")
    A("s_getreg_b32 s66, hwreg(HW_REG_XCC_ID)")
    A("s_lshl_b32 s72, s28, 7"); A(f"s_add_u32 s72, s72, {WS_XBOX}")
    A("v_lshl_add_u32 v13, v0, 2, s72")
    A("s_lshl_b32 s73, s29, 2"); A("s_add_u32 s72, s72, s73")
    A("s_and_b32 s66, s66, 15")
    A("s_waitcnt lgkmcnt(0)")
    tags_from_epoch()
    A("s_mul_i32 s67, s48, 0x01010101"); A("s_xor_b32 s67, s67, 0xffaa5500")
    A("s_xor_b32 s66, s66, s67")
    A("s_cmp_eq_u32 s3, 0")
    A("s_cbranch_scc0 L_nox")
    A("v_mov_b32 v14, s72"); A("v_mov_b32 v12, s66")
    A("s_mov_b64 exec, 1")
    A("global_store_dword v14, v12, s[26:27]")
    A("s_mov_b64 exec, -1")
    A("s_waitcnt vmcnt(17)")
    A("s_branch L_xd")
    A.label("L_nox")
    A("s_waitcnt vmcnt(16)")
    A.label("L_xd")
    FX = 32
    stamp()
    for k in range(16):
        A(f"v_lshlrev_b32 v{FX+2*k}, 16, v{XR+k}")
        A(f"v_and_b32 v{FX+2*k+1}, 0xffff0000, v{XR+k}")
    S = 64
    for k in range(8): A(f"v_pk_add_f32 v[{S+2*k}:{S+2*k+1}], v[{FX+4*k}:{FX+4*k+1}], v[{FX+4*k+2}:{FX+4*k+3}]")
    for n in (4, 2, 1):
        for k in range(n): A(f"v_pk_add_f32 v[{S+2*k}:{S+2*k+1}], v[{S+2*k}:{S+2*k+1}], v[{S+2*(k+n)}:{S+2*(k+n)+1}]")
    A(f"v_add_f32 v12, v{S}, v{S+1}")
    for r in (8, 4, 2, 1): A(f"v_add_f32_dpp v12, v12, v12 row_ror:{r} {DPP}")
    A(f"v_mul_f32 v12, {hex(f2u(1/512))}, v12")
    for k in range(16):
        A(f"v_pk_add_f32 v[{S+2*k}:{S+2*k+1}], v[{FX+2*k}:{FX+2*k+1}], v[12:13] op_sel_hi:[1,0] neg_lo:[0,1] neg_hi:[0,1]")
    for k in range(4): A(f"v_pk_mul_f32 v[{96+2*k}:{96+2*k+1}], v[{S+2*k}:{S+2*k+1}], v[{S+2*k}:{S+2*k+1}]")
    for k in range(4, 16):
        q = k & 3
        A(f"v_pk_fma_f32 v[{96+2*q}:{96+2*q+1}], v[{S+2*k}:{S+2*k+1}], v[{S+2*k}:{S+2*k+1}], v[{96+2*q}:{96+2*q+1}]")
    A("v_pk_add_f32 v[96:97], v[96:97], v[98:99]"); A("v_pk_add_f32 v[100:101], v[100:101], v[102:103]")
    A("v_pk_add_f32 v[96:97], v[96:97], v[100:101]")
    A("v_add_f32 v14, v96, v97")
    for r in (8, 4, 2, 1): A(f"v_add_f32_dpp v14, v14, v14 row_ror:{r} {DPP}")
    A(f"v_mul_f32 v14, {hex(f2u(1/512))}, v14")
    A("v_cvt_pk_bf16_f32 v12, 0, v12")
    A("v_cvt_pk_bf16_f32 v14, 0, v14")
    A(f"v_add_f32 v14, {hex(f2u(1e-5))}, v14")
    A("v_cvt_pk_bf16_f32 v14, 0, v14")
    A("v_sqrt_f32 v14, v14")
    A("v_cvt_pk_bf16_f32 v14, 0, v14")
    A("v_rcp_f32 v14, v14")
    for k in range(4):
        A(f"v_pk_add_f32 v[{S+2*k}:{S+2*k+1}], v[{FX+2*k}:{FX+2*k+1}], v[12:13] op_sel_hi:[1,0] neg_lo:[0,1] neg_hi:[0,1]")
    for k in range(4): A(f"v_cvt_pk_bf16_f32 v{XR+k}, v{S+2*k}, v{S+2*k+1}")
    for k in range(4):
        A(f"v_lshlrev_b32 v{S+2*k}, 16, v{XR+k}")
        A(f"v_and_b32 v{S+2*k+1}, 0xffff0000, v{XR+k}")
    for k in range(4): A(f"v_pk_mul_f32 v[{S+2*k}:{S+2*k+1}], v[{S+2*k}:{S+2*k+1}], v[14:15] op_sel_hi:[1,0]")
    for k in range(4): A(f"v_cvt_pk_bf16_f32 v{XR+k}, v{S+2*k}, v{S+2*k+1}")
    A("s_mul_i32 s72, s3, 0x500")
    A(f"v_mul_u32_u24 v5, {XNP}, v3"); A("v_lshl_add_u32 v5, v4, 4, v5"); A("v_add_u32 v5, s72, v5")
    A(f"ds_write_b128 v5, v[{XR}:{XR+3}] offset:{L_XN}")
    A(f"v_mul_u32_u24 v5, {XNP}, v11"); A("v_lshl_add_u32 v5, v3, 4, v5")
    XF = 32
    WF = 96
    A("v_lshrrev_b32 v12, 2, v4"); A("v_lshl_add_u32 v12, v3, 3, v12")
    A("v_lshlrev_b32 v15, 7, v12"); A("v_lshl_add_u32 v15, v11, 3, v15")
    A(f"v_add_u32 v15, {L_WQ}, v15")
    A("s_mov_b32 exec_hi, 0")
    A(f"global_load_dword v14, v13, s[26:27] {pflags}")
    A("s_mov_b64 exec, -1")
    A("s_waitcnt lgkmcnt(0)")
    A("s_cmp_eq_u32 s3, 0")
    A("s_cbranch_scc0 L_hf")

    for s in range(4): A(f"ds_read_b128 v[{XF+4*s}:{XF+4*s+3}], v5 offset:{L_XN + 64*s}")
    A("s_lshl_b32 s72, s28, 15"); A("s_lshl_b32 s73, s30, 11"); A("s_add_u32 s72, s72, s73")
    A("s_lshl_b32 s73, s31, 8"); A("s_add_u32 s72, s72, s73"); A(f"s_add_u32 s72, s72, {WS_QBOX}")
    A("v_lshlrev_b32 v5, 13, v11"); A("v_lshl_add_u32 v5, v3, 4, v5"); A("v_add_u32 v5, s72, v5")
    stamp()
    A("s_waitcnt vmcnt(2)")
    stamp()
    tile_reads(L_WQ, 4, WF)
    A("s_waitcnt lgkmcnt(0)")
    tile_mfma(64, 4, WF, XF)
    A("s_lshl_b32 s62, s28, 2"); A("s_add_u32 s62, s62, s30")
    A("s_lshl_b32 s72, s62, 13"); A(f"s_add_u32 s72, s72, {WS_QBOX + 4096}")
    A("v_bfe_u32 v8, v0, 2, 2"); A("v_lshlrev_b32 v8, 9, v8")
    A("v_lshl_add_u32 v8, v3, 7, v8"); A("v_lshl_add_u32 v8, v11, 5, v8"); A("v_add_u32 v8, s72, v8")
    for k in range(16): A(f"v_and_or_b32 v{64+k}, v{64+k}, v2, {TAU[k&3]}")
    xcc_wait()
    ex16()
    publish([(5, 64+4*nt, nt*64) for nt in range(4)])
    A("s_mov_b64 exec, -1")
    stamp()
    if qdelay: A(f"s_sleep {qdelay}")
    poll([(32 + 8*kq + 4*hf, 8, kq*2048 - 4096 + 16*hf) for kq in range(4) for hf in range(2)], 6, 7, hsleep)
    for k in range(4): A(f"v_pk_add_f32 v[{32+2*k}:{33+2*k}], v[{32+2*k}:{33+2*k}], v[{40+2*k}:{41+2*k}]")
    for k in range(4): A(f"v_pk_add_f32 v[{48+2*k}:{49+2*k}], v[{48+2*k}:{49+2*k}], v[{56+2*k}:{57+2*k}]")
    for k in range(4): A(f"v_pk_add_f32 v[{32+2*k}:{33+2*k}], v[{32+2*k}:{33+2*k}], v[{48+2*k}:{49+2*k}]")
    for k in range(4): A(f"v_cvt_pk_bf16_f32 v{40+k}, v{32+2*k}, v{33+2*k}")
    A("v_lshlrev_b32 v5, 4, v0")
    A(f"ds_write_b128 v5, v[40:43] offset:{L_QF}")
    A("v_mov_b32 v16, s78")
    A("ds_write_b32 v1, v16")
    stamp()
    A("v_and_b32 v5, 31, v0"); A("v_lshlrev_b32 v6, 3, v5")
    A("s_lshl_b32 s72, s62, 9"); A(f"s_add_u32 s72, s72, {WS_SBOX}")
    A("v_lshl_add_u32 v8, v5, 4, s72")
    A("s_lshl_b32 s73, s31, 4"); A("s_add_u32 s73, s73, s72")
    A("v_lshrrev_b32 v9, 3, v5"); A("v_lshl_add_u32 v9, v9, 7, s73")
    A(f"s_mov_b32 s64, {hex(CSC)}")
    ldswait(1, 4, 8, 19)
    A(f"ds_read_b64 v[16:17], v6 offset:{L_ST}")
    A("s_waitcnt lgkmcnt(0)")
    A("v_mov_b32 v20, v16")
    allred8("v_max_f32", 20)
    A(f"v_and_or_b32 v20, v20, v2, {T0}")
    A("v_sub_f32 v21, v16, v20"); A("v_mul_f32 v21, s64, v21"); A("v_exp_f32 v21, v21"); A("v_mul_f32 v21, v21, v17")
    allred8("v_add_f32", 21)
    A(f"v_and_or_b32 v21, v21, v2, {T1}")
    A(f"v_mov_b32 v22, {T2}"); A(f"v_mov_b32 v23, {T3}")
    A("s_mov_b32 exec_lo, 0x01010101"); A("s_mov_b32 exec_hi, 0")
    publish([(9, 20, 0)])
    A("s_mov_b32 exec_lo, -1")
    stamp()
    if fdelay: A(f"s_sleep {fdelay}")
    poll([(24, 8, 0)], 6, 7, hsleep)
    A("v_mov_b32 v20, v24")
    allred8("v_max_f32", 20)
    A("v_sub_f32 v21, v24, v20"); A("v_mul_f32 v21, s64, v21"); A("v_exp_f32 v21, v21"); A("v_mul_f32 v21, v21, v25")
    allred8("v_add_f32", 21)
    A("v_sub_f32 v22, v16, v20"); A("v_mul_f32 v22, s64, v22"); A("v_exp_f32 v22, v22")
    A("v_rcp_f32 v21, v21")
    A("v_mul_f32 v22, v22, v21")
    A("v_lshlrev_b32 v5, 2, v5")
    A("s_mov_b32 exec_hi, 0")
    A(f"ds_write_b32 v5, v22 offset:{L_F}")
    A("s_waitcnt lgkmcnt(0)")
    stamp()
    dump_stamps(6, 7)
    A("s_endpgm")

    A.label("L_hf"); A.reset()
    nst[0] = 3
    A(f"s_mov_b32 s61, {hex(NLOG2E)}")
    A("s_mov_b32 s63, 0x07060302")
    A("s_cmp_lt_u32 s54, 28")
    A("s_cbranch_scc0 L_nodown")
    A("s_and_b32 s72, s55, 1"); A("s_lshl_b32 s72, s72, 7"); A("v_add_u32 v5, s72, v5")
    for s in range(2): A(f"ds_read_b128 v[{XF+4*s}:{XF+4*s+3}], v5 offset:{L_XN + 0x500 + 64*s}")
    A("s_lshl_b32 s72, s54, 14"); A("s_lshl_b32 s73, s55, 8"); A("s_add_u32 s72, s72, s73"); A(f"s_add_u32 s72, s72, {WS_GBOX + 4096}")
    A("v_lshrrev_b32 v6, 1, v3"); A("v_lshlrev_b32 v6, 11, v6"); A("v_lshl_add_u32 v6, v11, 5, v6")
    A("v_and_b32 v7, 1, v3"); A("v_lshl_add_u32 v6, v7, 4, v6"); A("v_add_u32 v6, s72, v6")
    A("v_add_u32 v7, 0x2000, v6")
    stamp()
    A("s_waitcnt vmcnt(1)")
    stamp()
    tile_reads(L_GA, 2, WF); tile_reads(L_UP, 2, WF + 32)
    A("s_waitcnt lgkmcnt(0)")
    tile_mfma(64, 2, WF, XF); tile_mfma(80, 2, WF + 32, XF)
    for k in range(32): A(f"v_and_or_b32 v{64+k}, v{64+k}, v2, {TAU[k&3]}")
    xcc_wait()
    ex16()
    publish([(6 + (nt >> 1), 64+16*mat+4*nt, (nt & 1) * 4096 - 4096 + mat*128) for mat in range(2) for nt in range(4)])
    A("s_mov_b64 exec, -1")
    dma(8, 44, 59, 8192, 8, L_DN, wflags)
    stamp()
    A("s_lshl_b32 s72, s54, 3"); A("s_add_u32 s65, s72, s55")
    A("s_lshl_b32 s72, s65, 11"); A(f"s_add_u32 s72, s72, {WS_GBOX}")
    A("v_lshrrev_b32 v5, 3, v0"); A("v_lshlrev_b32 v5, 8, v5"); A("v_and_b32 v8, 7, v0"); A("v_lshl_add_u32 v5, v8, 4, v5"); A("v_add_u32 v5, s72, v5")
    A("s_lshl_b32 s72, s65, 5"); A(f"s_add_u32 s72, s72, {WS_HBOX}")
    A("v_bfe_u32 v8, v0, 1, 2"); A("v_mul_u32_u24 v8, 7168, v8"); A("v_and_b32 v9, 1, v0"); A("v_lshl_add_u32 v8, v9, 4, v8"); A("v_add_u32 v8, s72, v8")
    if fdelay: A(f"s_sleep {fdelay}")
    poll([(20, 5, 0), (24, 5, 128)], 6, 7, hsleep)
    tile_reads(L_DN, 2, WF)
    for r in range(4): A(f"v_permlane32_swap_b32 v{20+r}, v{24+r}")
    for r in range(4): A(f"v_add_f32 v{20+r}, v{20+r}, v{24+r}")
    for r in range(4): A(f"v_mov_b32 v{24+r}, v{20+r}")
    for r in range(4): A(f"v_permlane16_swap_b32 v{20+r}, v{24+r}")
    for r in range(4): A(f"v_add_f32 v{20+r}, v{20+r}, v{24+r}")
    for r in range(4): A(f"v_add_f32_dpp v{20+r}, v{20+r}, v{20+r} row_ror:8 {DPP}")
    for r in range(4): A(f"v_cvt_pk_bf16_f32 v{20+r}, 0, v{20+r}")
    for r in range(4): A(f"v_permlane32_swap_b32 v{20+r}, v{24+r}")
    silu(28, 20, 4)
    for r in range(4): A(f"v_mul_f32 v{28+r}, v{28+r}, v{24+r}")
    for r in range(4): A(f"v_cvt_pk_bf16_f32 v{28+r}, 0, v{28+r}")
    for r in range(4): A(f"v_or_b32 v{28+r}, {TAU[r]}, v{28+r}")
    A("s_mov_b64 exec, 0xff")
    publish([(8, 28, 0)])
    A("s_mov_b64 exec, -1")
    stamp()
    A("s_lshl_b32 s72, s54, 8"); A(f"s_add_u32 s72, s72, {WS_HBOX}")
    A("v_mul_u32_u24 v5, 7168, v11"); A("v_lshl_add_u32 v5, v3, 5, v5"); A("v_add_u32 v5, s72, v5")
    ex16()
    if fdelay: A(f"s_sleep {fdelay}")
    poll([(32, 5, 0), (36, 5, 16), (40, 5, 128), (44, 5, 144)], 6, 7, hsleep)
    for k in range(8): A(f"v_perm_b32 v{48+k}, v{33+2*k}, v{32+2*k}, s63")
    A("s_waitcnt lgkmcnt(0)")
    tile_mfma(64, 2, WF, 48)
    A("s_lshl_b32 s72, s55, 15"); A("s_lshl_b32 s73, s54, 7"); A("s_add_u32 s72, s72, s73"); A(f"s_add_u32 s72, s72, {WS_FIN}")
    A("v_lshlrev_b32 v5, 5, v11"); A("v_lshrrev_b32 v6, 1, v3"); A("v_lshl_add_u32 v5, v6, 12, v5")
    A("v_and_b32 v6, 1, v3"); A("v_lshl_add_u32 v5, v6, 4, v5"); A("v_add_u32 v5, s72, v5")
    for nt in range(1, 4): A(f"v_add_u32 v{5+nt}, {nt*8192}, v5")
    for k in range(16): A(f"v_and_or_b32 v{64+k}, v{64+k}, v2, {TAU[k&3]}")
    ex16()
    for nt in range(4): A(f"global_store_dwordx4 v{5+nt}, v[{64+4*nt}:{67+4*nt}], s[26:27] sc1")
    A("s_mov_b64 exec, -1")
    A.label("L_nodown")
    stamp()
    dump_stamps(6, 7)
    A("s_endpgm")

    A.raw(".p2align 6")
    A.label("L_kv"); A.reset()
    nst[0] = 1
    KR, VR = 32, 96
    DT = 16
    QF = 12
    A("s_sub_u32 s54, s3, 2")
    A("v_bfe_u32 v10, v0, 2, 2")
    A("v_lshlrev_b32 v4, 4, v11"); A("v_lshl_add_u32 v4, v10, 8, v4"); A("v_lshl_add_u32 v4, v3, 6, v4")
    A("v_lshlrev_b32 v5, 4, v0")
    A("s_lshl_b32 s55, s30, 3"); A("s_add_u32 s55, s55, s28"); A("s_lshl_b32 s55, s55, 22")
    A("s_lshl_b32 s72, s31, 17"); A("s_add_u32 s55, s55, s72"); A("s_add_u32 s55, s55, 0x300000")
    A("s_lshl_b32 s72, s31, 12"); A("s_lshl_b32 s73, s54, 10"); A("s_add_u32 s74, s72, s73")
    def koff(i):
        A(f"s_add_u32 s{56+i}, s74, {i*8192}"); A(f"s_and_b32 s{56+i}, s{56+i}, 0x1ffff"); A(f"s_add_u32 s{56+i}, s{56+i}, s55")
    for i in range(cap): koff(i)
    A("s_waitcnt lgkmcnt(0)")
    stamp()
    srd(32, 6, "0x8000000"); srd(36, 8, "0x8000000")
    issued = []
    def ldK(i):
        A(f"buffer_load_dwordx4 v[{KR+4*i}:{KR+4*i+3}], v4, s[32:35], s{56+i} offen {kvflags}"); issued.append(("K", i))
    def ldV(i):
        A(f"buffer_load_dwordx4 v[{VR+4*i}:{VR+4*i+3}], v5, s[36:39], s{56+i} offen {kvflags}"); issued.append(("V", i))
    def waitfor(tag):
        n = len(issued) - 1 - issued.index(tag)
        A(f"s_waitcnt vmcnt({n})")
    def ldWO():
        for t in range(2):
            A(f"s_add_u32 s72, s75, {t*65536}")
            A(f"s_add_u32 m0, s76, {t*8192}")
            A(f"buffer_load_dwordx4 v6, s[40:43], s72 offen {wflags} lds"); issued.append(("W", t))
    for i in range(cap): ldK(i)
    A("s_load_dword s52, s[26:27], 0")
    A("s_barrier")
    srd(40, 12, "0x400000")
    A("s_lshl_b32 s77, s28, 2"); A("s_add_u32 s77, s77, s30")
    A("s_lshl_b32 s75, s77, 17"); A("s_lshl_b32 s72, s54, 13"); A("s_add_u32 s75, s75, s72")
    A("s_lshl_b32 s72, s31, 7"); A("s_add_u32 s75, s75, s72")
    A("s_lshl_b32 s76, s54, 10"); A(f"s_add_u32 s76, s76, {L_WO}")
    A("s_and_b32 s72, s54, 1"); A("s_lshl_b32 s72, s72, 2")
    A("v_and_b32 v6, 1, v3"); A("v_lshlrev_b32 v6, 1, v6"); A("v_or_b32 v6, s72, v6")
    A("v_and_b32 v7, 7, v0"); A("v_xor_b32 v6, v6, v7"); A("v_lshlrev_b32 v6, 4, v6")
    A("v_lshrrev_b32 v7, 3, v0"); A("v_lshl_add_u32 v6, v7, 10, v6")
    A("v_and_b32 v7, 1, v0"); A("v_lshlrev_b32 v7, 4, v7"); A("v_mov_b32 v8, 0xffff"); A("v_lshlrev_b32 v7, v7, v8")
    A("v_cmp_gt_u32 vcc, 2, v11")
    A("v_cndmask_b32 v8, 0, v7, vcc")
    A("v_cndmask_b32 v9, v7, 0, vcc")
    A(f"s_mov_b32 s79, {hex(CSC)}")
    seq = [("K", i) for i in range(cap, 16)] + [("V", i) for i in range(nv_early)]
    if wo_pos == "early": seq = seq[:4] + [("W", 0)] + seq[4:]
    for kind, i in seq:
        if kind == "K": koff(i)
        if kind == "W": ldWO(); continue
        A(f"s_waitcnt vmcnt({cap-1})")
        (ldK if kind == "K" else ldV)(i)
    waitfor(("K", 15))
    A("s_waitcnt lgkmcnt(0)")
    tags_from_epoch()
    stamp()
    A(f"v_mov_b32 v1, {L_FLAG}")
    ldswait(1, 0, None, 7)
    A("v_readfirstlane_b32 s78, v7")
    A(f"ds_read_b128 v[{QF}:{QF+3}], v5 offset:{L_QF}")
    A("s_waitcnt lgkmcnt(0)")
    stamp()
    nv = nv_early
    for gq in range(4):
        for t in range(4):
            i = 4*gq + t
            A(f"v_mfma_f32_16x16x32_bf16 v[{DT+4*t}:{DT+4*t+3}], v[{KR+4*i}:{KR+4*i+3}], v[{QF}:{QF+3}], 0")
        if nv < nv_early + nv_mid and nv < 16 and gq in (0, 2):
            ldV(nv); nv += 1
        for c in range(4):
            for t in range(4):
                i = 4*gq + t
                z = KR + 4*i
                if c == 0: A(f"v_mov_b32_dpp v{z}, v{DT+4*t} quad_perm:[0,0,0,0] {DPP}")
                else: A(f"v_add_f32_dpp v{z}, v{DT+4*t+c}, v{z} quad_perm:[{c},{c},{c},{c}] {DPP}")
    Z = lambda i: KR + 4*i
    A(f"v_max3_f32 v16, v{Z(0)}, v{Z(1)}, v{Z(2)}"); A(f"v_max3_f32 v17, v{Z(3)}, v{Z(4)}, v{Z(5)}")
    A(f"v_max3_f32 v18, v{Z(6)}, v{Z(7)}, v{Z(8)}"); A(f"v_max3_f32 v19, v{Z(9)}, v{Z(10)}, v{Z(11)}")
    A(f"v_max3_f32 v16, v16, v{Z(12)}, v{Z(13)}"); A(f"v_max3_f32 v17, v17, v{Z(14)}, v{Z(15)}")
    A("v_max3_f32 v16, v16, v17, v18"); A("v_max_f32 v16, v16, v19")
    allred_rows("v_max_f32", 16, 18)
    A("v_mul_f32 v18, s79, v16")
    for i in range(16): A(f"v_fma_f32 v{Z(i)}, v{Z(i)}, s79, -v18")
    for i in range(16): A(f"v_exp_f32 v{Z(i)}, v{Z(i)}")
    while nv < nv_early + nv_mid and nv < 16:
        ldV(nv); nv += 1
    for k in range(4): A(f"v_add_f32 v{20+k}, v{Z(k)}, v{Z(k+4)}")
    for k in range(4): A(f"v_add_f32 v{20+k}, v{20+k}, v{Z(k+8)}")
    for k in range(4): A(f"v_add_f32 v{20+k}, v{20+k}, v{Z(k+12)}")
    A("v_add_f32 v20, v20, v21"); A("v_add_f32 v22, v22, v23"); A("v_add_f32 v17, v20, v22")
    allred_rows("v_add_f32", 17, 18)
    A("s_lshl_b32 s72, s54, 3")
    A("v_lshl_add_u32 v7, v10, 6, s72")
    A(f"ds_write_b64 v7, v[16:17] offset:{L_ST}")
    A("v_mov_b32 v7, 1")
    A("s_mov_b64 exec, 1")
    A("ds_add_u32 v1, v7 offset:4")
    A("s_mov_b64 exec, -1")
    for i in range(16): A(f"v_cvt_pk_bf16_f32 v{Z(i)+1}, v{Z(i)}, v{Z(i)}")
    for i in range(16):
        A(f"v_and_b32 v{Z(i)+2}, v{Z(i)+1}, v8"); A(f"v_and_b32 v{Z(i)+3}, v{Z(i)+1}, v9")
    stamp()
    O0, O1 = 16, 20
    def tail_setup():
        A(f"s_mul_i32 s72, s54, {ORP}"); A("v_add_u32 v24, s72, v5")
        A(f"v_mul_u32_u24 v25, {2*ORP}, v11")
        A("v_bfe_u32 v7, v0, 2, 1"); A("v_lshl_add_u32 v25, v7, 10, v25")
        A("v_lshrrev_b32 v7, 3, v0"); A("v_lshl_add_u32 v25, v7, 4, v25")
        A("s_lshl_b32 s72, s54, 7"); A("v_add_u32 v25, s72, v25")
        A("s_lshr_b32 s73, s54, 1")
        A("s_lshl_b32 s72, s73, 5"); A("v_lshl_add_u32 v26, v11, 3, s72")
        A("s_lshl_b32 s72, s77, 3"); A("s_add_u32 s72, s72, s31"); A("s_lshl_b32 s72, s72, 11")
        A("s_lshl_b32 s45, s54, 8"); A("s_add_u32 s72, s72, s45"); A(f"s_add_u32 s72, s72, {WS_OBOX}")
        A("v_lshrrev_b32 v7, 2, v0"); A("v_lshl_add_u32 v27, v7, 4, s72")
        A("s_lshl_b32 s44, s28, 2"); A("s_add_u32 s72, s44, s73"); A("s_lshl_b32 s72, s72, 14"); A("s_lshl_b32 s45, s30, 9"); A("s_add_u32 s72, s72, s45")
        A("s_and_b32 s45, s54, 1"); A("s_lshl_b32 s45, s45, 8"); A("s_add_u32 s72, s72, s45"); A(f"s_add_u32 s72, s72, {WS_OBOX}")
        A("v_lshrrev_b32 v7, 3, v0"); A("v_lshlrev_b32 v28, 11, v7"); A("v_and_b32 v7, 7, v0"); A("v_lshl_add_u32 v28, v7, 4, v28"); A("v_add_u32 v28, s72, v28")
        A(f"s_mul_i32 s72, s73, {OBP}"); A("s_lshr_b32 s45, s45, 1"); A("s_add_u32 s72, s72, s45")
        A("v_lshlrev_b32 v29, 3, v7"); A("v_lshrrev_b32 v7, 1, v3"); A("v_lshl_add_u32 v29, v7, 6, v29")
        A("v_and_b32 v7, 1, v3"); A("v_lshl_add_u32 v29, v7, 2, v29"); A("v_add_u32 v29, s72, v29")
        A(f"v_mul_u32_u24 v30, {OBP}, v11"); A("v_lshl_add_u32 v30, v3, 4, v30")
        A("v_bfe_u32 v31, v0, 3, 1"); A("v_lshl_or_b32 v7, v7, 1, v31"); A("s_and_b32 s45, s54, 3"); A("v_xor_b32 v7, s45, v7"); A("v_lshlrev_b32 v31, 5, v7")
        A("v_lshl_add_u32 v7, v3, 3, v10"); A("v_lshl_add_u32 v31, v7, 7, v31"); A("v_lshl_add_u32 v31, v11, 3, v31"); A(f"v_add_u32 v31, {L_WO}, v31")
        A("s_lshl_b32 s72, s31, 3"); A("s_lshl_b32 s45, s45, 1"); A("s_add_u32 s72, s72, s45"); A("s_lshl_b32 s72, s72, 12")
        A("s_lshl_b32 s45, s77, 7"); A("s_add_u32 s72, s72, s45"); A(f"s_add_u32 s72, s72, {WS_SIN}")
        A("v_lshlrev_b32 v1, 5, v11"); A("v_lshrrev_b32 v7, 1, v3"); A("v_lshl_add_u32 v1, v7, 12, v1")
        A("v_and_b32 v7, 1, v3"); A("v_lshl_add_u32 v1, v7, 4, v1"); A("v_add_u32 v1, s72, v1")
        A("s_lshl_b32 s72, s2, 12"); A(f"s_add_u32 s72, s72, {WS_SIN}"); A("v_lshl_add_u32 v4, v0, 4, s72")
        out_index(8, 7)
    wo_done = wo_pos == "early"
    c2 = cap2 or cap
    setup_done = False
    for i in range(16):
        waitfor(("V", i))
        while nv < 16 and nv - i - 1 < c2:
            ldV(nv); nv += 1
        if nv == 16 and not wo_done and 16 - i - 1 < c2:
            ldWO(); wo_done = True
        A(f"v_mfma_f32_16x16x16_bf16 v[{O0}:{O0+3}], v[{Z(i)+2}:{Z(i)+3}], v[{VR+4*i}:{VR+4*i+1}], " + ("0" if i == 0 else f"v[{O0}:{O0+3}]"))
        A(f"v_mfma_f32_16x16x16_bf16 v[{O1}:{O1+3}], v[{Z(i)+2}:{Z(i)+3}], v[{VR+4*i+2}:{VR+4*i+3}], " + ("0" if i == 0 else f"v[{O1}:{O1+3}]"))
        if i == 8: tail_setup()
    stamp()
    A(f"ds_write_b128 v24, v[{O0}:{O0+3}] offset:{L_ORED}")
    A(f"ds_write_b128 v24, v[{O1}:{O1+3}] offset:{L_ORED+1024}")
    A("s_waitcnt lgkmcnt(0)")
    A("s_barrier")
    A(f"ds_read_b64 v[12:13], v26 offset:{L_F}")
    A(f"ds_read_b128 v[32:35], v25 offset:{L_ORED}")
    A(f"ds_read_b128 v[36:39], v25 offset:{L_ORED+ORP}")
    A("s_waitcnt lgkmcnt(1)")
    for k in range(4): A(f"v_mul_f32 v{32+k}, v{32+k}, v12")
    A("s_waitcnt lgkmcnt(0)")
    for k in range(4): A(f"v_fmac_f32 v{32+k}, v{36+k}, v13")
    for qp in ("[1,0,3,2]", "[2,3,0,1]"):
        for k in range(4): A(f"v_add_f32_dpp v{32+k}, v{32+k}, v{32+k} quad_perm:{qp} {DPP}")
    for k in range(4): A(f"v_and_or_b32 v{32+k}, v{32+k}, v2, {TAU[k]}")
    A("s_mov_b32 exec_lo, 0x11111111"); A("s_mov_b32 exec_hi, 0x11111111")
    publish([(27, 32, 0)])
    A("s_mov_b64 exec, -1")
    stamp()
    poll([(40, 28, 0), (44, 28, 128)], 6, 7, psleep)
    stamp()
    for k in range(4): A(f"v_permlane32_swap_b32 v{40+k}, v{44+k}")
    for k in range(4): A(f"v_add_f32 v{40+k}, v{40+k}, v{44+k}")
    for k in range(2): A(f"v_permlane16_swap_b32 v{40+k}, v{42+k}")
    for k in range(2): A(f"v_add_f32 v{40+k}, v{40+k}, v{42+k}")
    for k in range(2): A(f"v_add_f32_dpp v{40+k}, v{40+k}, v{40+k} row_ror:8 {DPP}")
    A("v_cvt_pk_bf16_f32 v40, v40, v41")
    A(f"ds_write_b32 v29, v40 offset:{L_OB}")
    A("s_waitcnt lgkmcnt(0)")
    A("s_barrier")
    A("s_cmp_gt_u32 s54, 3")
    A("s_cbranch_scc1 L_fin")
    for s in range(4):
        A(f"ds_read_b128 v[{48+4*s}:{51+4*s}], v30 offset:{L_OB + 64*s}")
        for t2 in range(2):
            A(f"ds_read_b64_tr_b16 v[{64+4*s+2*t2}:{65+4*s+2*t2}], v31 offset:{s*4096 + t2*512}")
    for s in range(4):
        A(f"s_waitcnt lgkmcnt({9-3*s})")
        A(f"v_mfma_f32_16x16x32_bf16 v[44:47], v[{64+4*s}:{67+4*s}], v[{48+4*s}:{51+4*s}], " + ("0" if s == 0 else "v[44:47]"))
    ex16()
    for k in range(4): A(f"v_and_or_b32 v{44+k}, v{44+k}, v2, {TAU[k]}")
    A("global_store_dwordx4 v1, v[44:47], s[26:27] sc1")
    stamp()
    A("s_branch L_kvdone")
    A.label("L_fin"); A.reset()
    A("s_cmp_lg_u32 s54, 7")
    A("s_cbranch_scc1 L_kvdone")
    A("s_cmp_lt_u32 s2, 64")
    A("s_cbranch_scc0 L_kvdone")
    A("global_load_ushort v65, v8, s[4:5]")
    A(f"s_mov_b32 s61, {hex(NLOG2E)}")
    for k in range(4): A(f"v_mov_b32 v{60+k}, {TAU[k]}")
    A(f"v_add_u32 v9, {WS_FIN - WS_SIN}, v4")
    poll([(60, 9, 3072), (48, 9, 0), (52, 9, 1024), (56, 9, 2048)], 6, 7, psleep, half_last=True)
    reduce_f(48)
    A("v_cvt_pk_bf16_f32 v48, 0, v48")
    silu(64, 48, 1)
    A("v_lshlrev_b32 v65, 16, v65")
    poll([(32, 4, 0), (36, 4, 1024), (40, 4, 2048), (44, 4, 3072)], 6, 7, psleep)
    stamp()
    reduce_f(32)
    A("v_cvt_pk_bf16_f32 v32, 0, v32")
    A("v_mul_f32 v32, v32, v64")
    A("v_cvt_pk_bf16_f32 v32, 0, v32")
    A("v_add_f32 v32, v32, v65")
    A("v_cvt_pk_bf16_f32 v32, v32, v32")
    A("s_mov_b32 exec_lo, 0x00ff00ff"); A("s_mov_b32 exec_hi, 0x00ff00ff")
    A("global_store_short v8, v32, s[22:23]")
    A("s_cmp_lg_u32 s2, 0")
    A("s_cbranch_scc1 L_kvdone")
    A("s_mov_b64 exec, 1")
    A("v_mov_b32 v5, 0"); A("v_mov_b32 v6, s52")
    A("global_store_dword v5, v6, s[26:27] sc1")
    A.label("L_kvdone")
    if stamps:
        A("s_waitcnt vmcnt(0)")
        stamp()
        dump_stamps(6, 7)
    A.label("L_end")
    A("s_endpgm")
    A.raw('.section .rodata,"a"'); A.raw(".p2align 6"); A.raw(f".amdhsa_kernel {NAME}_kernel")
    A.raw("  .amdhsa_next_free_vgpr 160"); A.raw("  .amdhsa_next_free_sgpr 102"); A.raw("  .amdhsa_accum_offset 160")
    A.raw("  .amdhsa_group_segment_fixed_size 0"); A.raw("  .amdhsa_kernarg_size 96"); A.raw("  .amdhsa_user_sgpr_count 2")
    A.raw("  .amdhsa_user_sgpr_kernarg_segment_ptr 1"); A.raw("  .amdhsa_system_sgpr_workgroup_id_x 1"); A.raw(".end_amdhsa_kernel")
    return A.text()

if __name__ == "__main__":
    out = sys.argv[1] if len(sys.argv) > 1 else f"cdna_kernels/{NAME}.s"
    kw = {}
    for a in sys.argv[2:]:
        k, v = a.split("=")
        try: v = int(v, 0)
        except ValueError: pass
        kw[k] = v
    open(out, "w").write(gen(**kw))
```

```python
import sys, struct, math
sys.path.insert(0, "work")
from asmlib import Asm

NAME = "recurrent_scan__sliding_block_cached__swiglu_ffn__decode"

def f2u(x): return struct.unpack("<I", struct.pack("<f", x))[0]

WS_E    = 0x0
WS_HBOX = 0x20000
WS_SBOX = 0x28000
WS_QBOX = 0x40000
WS_OBOX = 0x80000
WS_SIN  = 0x100000
WS_FIN  = 0x140000
WS_XBOX = 0x1000
WS_GBOX = 0x200000
WS_STAMP = 0x400000
L_XN, XNP = 0x0, 320
L_FLAG = 0x1000
L_QF = 0x1100
L_ST = 0x1500
L_F  = 0x1600
L_GX = 0x1700
L_OB, OBP = 0x1900, 320
L_ORED, ORP = 0x2000, 2080
L_WQ = 0x6400
L_GA = 0xA400
L_UP = 0xC400
L_DN = 0xE400
L_WO = 0x10400
L_TOTAL = 0x14400
NW = 10

DPP = "row_mask:0xf bank_mask:0xf"

def gen(stamps=False, cap=3, wflags="nt", kvflags="nt", nv_early=3, nv_mid=3, wo_pos="end", spin=1 << 20,
        psleep=2, hsleep=4, cap2=None, pflags='sc1', xtries=24, qdelay=24, fdelay=16, force_slow=False, padto=0, padcyc=0):
    A = Asm()
    A.raw(f"; @launch grid=(256,1,1) block=({64*NW},1,1) lds={L_TOTAL}")
    A.raw('.amdgcn_target "amdgcn-amd-amdhsa--gfx950"')
    A.raw(".text"); A.raw(f".globl {NAME}_kernel"); A.raw(".p2align 8"); A.raw(f".type {NAME}_kernel,@function")
    A.label(f"{NAME}_kernel")
    nst = [0]
    def stamp():
        if stamps:
            k = nst[0]; nst[0] += 1
            assert k < 11
            A(f"s_memrealtime s[{80+2*k}:{81+2*k}]")
    def dump_stamps(vtmp, vaddr):
        if not stamps: return
        A("s_waitcnt lgkmcnt(0)")
        A("s_mov_b64 exec, 1")
        A(f"s_mul_i32 s72, s2, {NW}"); A("s_add_u32 s72, s72, s3"); A("s_lshl_b32 s72, s72, 6"); A(f"s_add_u32 s72, s72, {WS_STAMP}")
        A(f"v_mov_b32 v{vaddr}, s72")
        for k in range(nst[0]):
            A(f"v_mov_b32 v{vtmp}, s{80+2*k}")
            A(f"global_store_dword v{vaddr}, v{vtmp}, s[26:27] offset:{4*k}")
    T0, T1, T2, T3 = "s48", "s49", "s50", "s51"
    TAU = [T0, T1, T2, T3]
    def tags_from_epoch():
        A("s_add_u32 s52, s52, 1")
        A("s_and_b32 s48, s52, 0xff")
        A("s_xor_b32 s49, s48, 0x55"); A("s_xor_b32 s50, s48, 0xaa"); A("s_xor_b32 s51, s48, 0xff")
    pollid = [0]
    def poll(loads, acc, acc2, sleep, half_last=False):
        n = pollid[0]; pollid[0] += 1
        A(f"s_branch L_poll{n}")
        A.label(f"L_pollr{n}")
        if sleep: A(f"s_sleep {sleep}")
        A("s_add_u32 s53, s53, 1")
        A(f"s_cmp_gt_u32 s53, {spin}")
        A("s_cbranch_scc1 L_end")
        A.label(f"L_poll{n}")
        for q, (d, va, off) in enumerate(loads):
            if half_last and q == 0:
                A("s_mov_b32 s72, exec_hi"); A("s_mov_b32 exec_hi, 0")
            A(f"global_load_dwordx4 v[{d}:{d+3}], v{va}, s[26:27] offset:{off} {pflags}")
            if half_last and q == 0:
                A("s_mov_b32 exec_hi, s72")
        first = True
        for q, (d, va, off) in enumerate(loads):
            A(f"s_waitcnt vmcnt({len(loads)-1-q})")
            if first:
                A(f"v_xor_b32 v{acc}, {T0}, v{d}")
                A(f"v_xor_b32 v{acc2}, {T1}, v{d+1}")
                first = False
            else:
                A(f"v_bitop3_b32 v{acc}, v{acc}, v{d}, {T0} bitop3:0xf6")
                A(f"v_bitop3_b32 v{acc2}, v{acc2}, v{d+1}, {T1} bitop3:0xf6")
            A(f"v_bitop3_b32 v{acc}, v{acc}, v{d+2}, {T2} bitop3:0xf6")
            A(f"v_bitop3_b32 v{acc2}, v{acc2}, v{d+3}, {T3} bitop3:0xf6")
        A(f"v_or_b32 v{acc}, v{acc}, v{acc2}")
        A(f"v_and_b32 v{acc}, 0xff, v{acc}")
        A(f"v_cmp_ne_u32 vcc, 0, v{acc}")
        A("s_and_b64 exec, exec, vcc")
        A(f"s_cbranch_scc1 L_pollr{n}")
        A("s_mov_b64 exec, -1")
    def publish(stores):
        n = pollid[0]; pollid[0] += 1
        A("s_cmp_eq_u32 s78, 1")
        A(f"s_cbranch_scc1 L_pf{n}")
        for va, d, off in stores: A(f"global_store_dwordx4 v{va}, v[{d}:{d+3}], s[26:27] offset:{off} sc1")
        A(f"s_branch L_pd{n}")
        A.label(f"L_pf{n}")
        for va, d, off in stores: A(f"global_store_dwordx4 v{va}, v[{d}:{d+3}], s[26:27] offset:{off}")
        A.label(f"L_pd{n}")
    def xcc_wait():
        n = pollid[0]; pollid[0] += 1
        A("s_mov_b32 exec_hi, 0")
        A("s_mov_b32 s78, 2")
        A("s_mov_b32 s67, 0")
        A(f"s_branch L_xc{n}")
        A.label(f"L_xr{n}")
        A("s_add_u32 s67, s67, 1")
        A(f"s_cmp_gt_u32 s67, {xtries}")
        A(f"s_cbranch_scc1 L_xe{n}")
        A("s_sleep 2")
        A(f"global_load_dword v14, v13, s[26:27] {pflags}")
        A.label(f"L_xc{n}")
        A("s_waitcnt vmcnt(0)")
        A("v_cmp_ne_u32 vcc, s66, v14")
        A(f"s_cbranch_vccnz L_xr{n}")
        if not force_slow: A("s_mov_b32 s78, 1")
        A.label(f"L_xe{n}")
        A("s_mov_b64 exec, -1")
    def reduce_f(a):
        for k in range(2): A(f"v_pk_add_f32 v[{a+2*k}:{a+2*k+1}], v[{a+2*k}:{a+2*k+1}], v[{a+4+2*k}:{a+4+2*k+1}]")
        for k in range(2): A(f"v_pk_add_f32 v[{a+8+2*k}:{a+8+2*k+1}], v[{a+8+2*k}:{a+8+2*k+1}], v[{a+12+2*k}:{a+12+2*k+1}]")
        for k in range(2): A(f"v_pk_add_f32 v[{a+2*k}:{a+2*k+1}], v[{a+2*k}:{a+2*k+1}], v[{a+8+2*k}:{a+8+2*k+1}]")
        A(f"v_permlane32_swap_b32 v{a}, v{a+2}"); A(f"v_permlane32_swap_b32 v{a+1}, v{a+3}")
        A(f"v_add_f32 v{a}, v{a}, v{a+2}"); A(f"v_add_f32 v{a+1}, v{a+1}, v{a+3}")
        A(f"v_permlane16_swap_b32 v{a}, v{a+1}")
        A(f"v_add_f32 v{a}, v{a}, v{a+1}")
        A(f"v_add_f32_dpp v{a}, v{a}, v{a} row_ror:8 {DPP}")
    def out_index(v, t):
        A(f"v_bfe_u32 v{v}, v0, 1, 2"); A(f"v_lshlrev_b32 v{v}, 10, v{v}")
        A(f"v_and_b32 v{t}, 1, v0"); A(f"v_lshl_add_u32 v{v}, v{t}, 3, v{v}"); A(f"v_lshl_add_u32 v{v}, v3, 1, v{v}")
        A("s_lshl_b32 s72, s2, 4"); A(f"v_add_u32 v{v}, s72, v{v}")
    def ldswait(vaddr, off, val, vt):
        n = pollid[0]; pollid[0] += 1
        A.label(f"L_lw{n}")
        A(f"ds_read_b32 v{vt}, v{vaddr} offset:{off}")
        A("s_add_u32 s53, s53, 1")
        A(f"s_cmp_gt_u32 s53, {spin}")
        A("s_cbranch_scc1 L_end")
        A("s_waitcnt lgkmcnt(0)")
        A(f"v_cmp_eq_u32 vcc, {val}, v{vt}" if val else f"v_cmp_ne_u32 vcc, 0, v{vt}")
        A(f"s_cbranch_vccnz L_lwd{n}")
        A("s_sleep 1")
        A(f"s_branch L_lw{n}")
        A.label(f"L_lwd{n}")
    def srd(s, lo, size):
        A(f"s_mov_b32 s{s}, s{lo}"); A(f"s_mov_b32 s{s+1}, s{lo+1}")
        A(f"s_mov_b32 s{s+2}, {size}"); A(f"s_mov_b32 s{s+3}, 0x20000")
    def allred8(op, v):
        A(f"{op}_dpp v{v}, v{v}, v{v} quad_perm:[1,0,3,2] {DPP}")
        A(f"{op}_dpp v{v}, v{v}, v{v} quad_perm:[2,3,0,1] {DPP}")
        A(f"{op}_dpp v{v}, v{v}, v{v} row_half_mirror {DPP}")
    def allred_rows(op, v, t):
        A(f"v_mov_b32 v{t}, v{v}"); A(f"v_permlane16_swap_b32 v{v}, v{t}"); A(f"{op} v{v}, v{v}, v{t}")
        A(f"v_mov_b32 v{t}, v{v}"); A(f"v_permlane32_swap_b32 v{v}, v{t}"); A(f"{op} v{v}, v{v}, v{t}")
    def reduce64x8(a):
        for k in range(4): A(f"v_permlane32_swap_b32 v{a+k}, v{a+4+k}")
        for k in range(4): A(f"v_add_f32 v{a+k}, v{a+k}, v{a+4+k}")
        for k in range(2): A(f"v_permlane16_swap_b32 v{a+k}, v{a+2+k}")
        for k in range(2): A(f"v_add_f32 v{a+k}, v{a+k}, v{a+2+k}")
        for r in (8, 4, 2, 1):
            for k in range(2): A(f"v_add_f32_dpp v{a+k}, v{a+k}, v{a+k} row_ror:{r} {DPP}")
    def dma(vaddr, srdn, sbase, step, n, ldsbase, flags):
        for t in range(n):
            A(f"s_add_u32 s72, s{sbase}, {t*step}")
            A(f"s_mov_b32 m0, {ldsbase + t*1024}")
            A(f"buffer_load_dwordx4 v{vaddr}, s[{srdn}:{srdn+3}], s72 offen {flags} lds")
    def silu(dst, src, n):
        for r in range(n): A(f"v_mul_f32 v{dst+r}, s61, v{src+r}")
        for r in range(n): A(f"v_exp_f32 v{dst+r}, v{dst+r}")
        for r in range(n): A(f"v_add_f32 v{dst+r}, 1.0, v{dst+r}")
        for r in range(n): A(f"v_rcp_f32 v{dst+r}, v{dst+r}")
        for r in range(n): A(f"v_mul_f32 v{dst+r}, v{dst+r}, v{src+r}")
        for r in range(n): A(f"v_cvt_pk_bf16_f32 v{dst+r}, 0, v{dst+r}")
    def tile_reads(base, nks, dst):
        for nt in range(4):
            for s in range(nks):
                for t2 in range(2):
                    q = dst + 4*(nt*nks + s) + 2*t2
                    A(f"ds_read_b64_tr_b16 v[{q}:{q+1}], v15 offset:{base - L_WQ + s*4096 + t2*512 + nt*32}")
    def tile_mfma(acc, nks, wf, xf):
        for s in range(nks):
            for nt in range(4):
                q = wf + 4*(nt*nks + s)
                A(f"v_mfma_f32_16x16x32_bf16 v[{acc+4*nt}:{acc+4*nt+3}], v[{q}:{q+3}], v[{xf+4*s}:{xf+4*s+3}], " + ("0" if s == 0 else f"v[{acc+4*nt}:{acc+4*nt+3}]"))
    def ex16():
        A("s_mov_b32 exec_lo, 0x000f000f"); A("s_mov_b32 exec_hi, 0x000f000f")
    CSC = f2u(math.log2(math.e) / math.sqrt(128.0))
    NLOG2E = f2u(-math.log2(math.e))

    stamp()
    if padto: A("s_memrealtime s[96:97]")
    if padcyc: A("s_memtime s[96:97]")
    A("s_cmp_ge_u32 s2, 256")
    A("s_cbranch_scc1 L_end")
    A("s_load_dwordx16 s[4:19], s[0:1], 0")
    A("s_load_dwordx8 s[20:27], s[0:1], 64")
    A("v_lshrrev_b32 v1, 6, v0")
    A("v_and_b32 v0, 63, v0")
    A("v_readfirstlane_b32 s3, v1")
    A("s_and_b32 s28, s2, 7")
    A("s_lshr_b32 s29, s2, 3")
    A("s_lshr_b32 s30, s2, 6")
    A("s_and_b32 s31, s29, 7")
    A("s_mov_b32 s53, 0")
    A("v_mov_b32 v2, 0xffffff00")
    A("v_lshrrev_b32 v3, 4, v0")
    A("v_and_b32 v11, 3, v0")
    A("s_cmp_gt_u32 s3, 1")
    A("s_cbranch_scc1 L_kv")

    A("s_setprio 3")
    A("v_and_b32 v4, 15, v0")
    A("s_lshr_b32 s55, s29, 2")
    A("s_and_b32 s54, s29, 3"); A("s_lshl_b32 s54, s54, 3"); A("s_add_u32 s54, s54, s28")
    A("v_lshlrev_b32 v5, 4, v4"); A("v_lshl_add_u32 v5, v3, 10, v5")
    for t in range(4):
        A(f"s_add_u32 s72, s30, {t}"); A("s_and_b32 s72, s72, 3"); A("s_lshl_b32 s72, s72, 8")
        A(f"v_add_u32 v{12+t}, s72, v5")
    A("v_lshrrev_b32 v9, 3, v0"); A("v_and_b32 v10, 7, v0"); A("v_lshlrev_b32 v10, 4, v10")
    A("v_lshl_add_u32 v6, v9, 13, v10")
    A("v_mul_u32_u24 v7, 3584, v9"); A("v_add_u32 v7, v7, v10")
    A("v_lshl_add_u32 v8, v9, 10, v10")
    A("s_lshl_b32 s57, s30, 20"); A("s_lshl_b32 s72, s28, 10"); A("s_add_u32 s57, s57, s72")
    A("s_lshl_b32 s72, s31, 7"); A("s_add_u32 s57, s57, s72")
    A(f"s_mul_i32 s58, s55, {64*3584}"); A("s_lshl_b32 s72, s54, 7"); A("s_add_u32 s58, s58, s72")
    A("s_lshl_b32 s59, s54, 16"); A("s_lshl_b32 s72, s55, 7"); A("s_add_u32 s59, s59, s72")
    A("s_cmp_lt_u32 s54, 28")
    A("s_cselect_b32 s60, 0x1c0000, 0")
    A("v_mov_b32 v16, 0"); A("v_mov_b32 v17, 0"); A(f"v_mov_b32 v1, {L_FLAG}")
    A("ds_write_b64 v1, v[16:17]")
    A("s_waitcnt lgkmcnt(0)")
    stamp()
    XR = 16
    for t in range(4):
        A(f"global_load_dwordx4 v[{XR+4*t}:{XR+4*t+3}], v{12+t}, s[4:5]")
    A("s_load_dword s52, s[26:27], 0")
    srd(32, 10, "0x400000"); srd(36, 16, "s60"); srd(40, 18, "s60"); srd(44, 20, "s60")
    A("s_cmp_eq_u32 s3, 0")
    A("s_cbranch_scc0 L_dmaf")
    dma(6, 32, 57, 8 * 8192, 16, L_WQ, wflags)
    A("s_branch L_dmad")
    A.label("L_dmaf")
    dma(7, 36, 58, 8 * 3584, 8, L_GA, wflags)
    dma(7, 40, 58, 8 * 3584, 8, L_UP, wflags)
    A.label("L_dmad")
    A("s_barrier")
    A("s_getreg_b32 s66, hwreg(HW_REG_XCC_ID)")
    A("s_lshl_b32 s72, s28, 7"); A(f"s_add_u32 s72, s72, {WS_XBOX}")
    A("v_lshl_add_u32 v13, v0, 2, s72")
    A("s_lshl_b32 s73, s29, 2"); A("s_add_u32 s72, s72, s73")
    A("s_and_b32 s66, s66, 15")
    A("s_waitcnt lgkmcnt(0)")
    tags_from_epoch()
    A("s_mul_i32 s67, s48, 0x01010101"); A("s_xor_b32 s67, s67, 0xffaa5500")
    A("s_xor_b32 s66, s66, s67")
    A("s_cmp_eq_u32 s3, 0")
    A("s_cbranch_scc0 L_nox")
    A("v_mov_b32 v14, s72"); A("v_mov_b32 v12, s66")
    A("s_mov_b64 exec, 1")
    A("global_store_dword v14, v12, s[26:27]")
    A("s_mov_b64 exec, -1")
    A("s_waitcnt vmcnt(17)")
    A("s_branch L_xd")
    A.label("L_nox")
    A("s_waitcnt vmcnt(16)")
    A.label("L_xd")
    FX = 32
    stamp()
    for k in range(16):
        A(f"v_lshlrev_b32 v{FX+2*k}, 16, v{XR+k}")
        A(f"v_and_b32 v{FX+2*k+1}, 0xffff0000, v{XR+k}")
    S = 64
    for k in range(8): A(f"v_pk_add_f32 v[{S+2*k}:{S+2*k+1}], v[{FX+4*k}:{FX+4*k+1}], v[{FX+4*k+2}:{FX+4*k+3}]")
    for n in (4, 2, 1):
        for k in range(n): A(f"v_pk_add_f32 v[{S+2*k}:{S+2*k+1}], v[{S+2*k}:{S+2*k+1}], v[{S+2*(k+n)}:{S+2*(k+n)+1}]")
    A(f"v_add_f32 v12, v{S}, v{S+1}")
    for r in (8, 4, 2, 1): A(f"v_add_f32_dpp v12, v12, v12 row_ror:{r} {DPP}")
    A(f"v_mul_f32 v12, {hex(f2u(1/512))}, v12")
    for k in range(16):
        A(f"v_pk_add_f32 v[{S+2*k}:{S+2*k+1}], v[{FX+2*k}:{FX+2*k+1}], v[12:13] op_sel_hi:[1,0] neg_lo:[0,1] neg_hi:[0,1]")
    for k in range(4): A(f"v_pk_mul_f32 v[{96+2*k}:{96+2*k+1}], v[{S+2*k}:{S+2*k+1}], v[{S+2*k}:{S+2*k+1}]")
    for k in range(4, 16):
        q = k & 3
        A(f"v_pk_fma_f32 v[{96+2*q}:{96+2*q+1}], v[{S+2*k}:{S+2*k+1}], v[{S+2*k}:{S+2*k+1}], v[{96+2*q}:{96+2*q+1}]")
    A("v_pk_add_f32 v[96:97], v[96:97], v[98:99]"); A("v_pk_add_f32 v[100:101], v[100:101], v[102:103]")
    A("v_pk_add_f32 v[96:97], v[96:97], v[100:101]")
    A("v_add_f32 v14, v96, v97")
    for r in (8, 4, 2, 1): A(f"v_add_f32_dpp v14, v14, v14 row_ror:{r} {DPP}")
    A(f"v_mul_f32 v14, {hex(f2u(1/512))}, v14")
    A("v_cvt_pk_bf16_f32 v12, 0, v12")
    A("v_cvt_pk_bf16_f32 v14, 0, v14")
    A(f"v_add_f32 v14, {hex(f2u(1e-5))}, v14")
    A("v_cvt_pk_bf16_f32 v14, 0, v14")
    A("v_sqrt_f32 v14, v14")
    A("v_cvt_pk_bf16_f32 v14, 0, v14")
    A("v_rcp_f32 v14, v14")
    for k in range(4):
        A(f"v_pk_add_f32 v[{S+2*k}:{S+2*k+1}], v[{FX+2*k}:{FX+2*k+1}], v[12:13] op_sel_hi:[1,0] neg_lo:[0,1] neg_hi:[0,1]")
    for k in range(4): A(f"v_cvt_pk_bf16_f32 v{XR+k}, v{S+2*k}, v{S+2*k+1}")
    for k in range(4):
        A(f"v_lshlrev_b32 v{S+2*k}, 16, v{XR+k}")
        A(f"v_and_b32 v{S+2*k+1}, 0xffff0000, v{XR+k}")
    for k in range(4): A(f"v_pk_mul_f32 v[{S+2*k}:{S+2*k+1}], v[{S+2*k}:{S+2*k+1}], v[14:15] op_sel_hi:[1,0]")
    for k in range(4): A(f"v_cvt_pk_bf16_f32 v{XR+k}, v{S+2*k}, v{S+2*k+1}")
    A("s_mul_i32 s72, s3, 0x500")
    A(f"v_mul_u32_u24 v5, {XNP}, v3"); A("v_lshl_add_u32 v5, v4, 4, v5"); A("v_add_u32 v5, s72, v5")
    A(f"ds_write_b128 v5, v[{XR}:{XR+3}] offset:{L_XN}")
    A(f"v_mul_u32_u24 v5, {XNP}, v11"); A("v_lshl_add_u32 v5, v3, 4, v5")
    XF = 32
    WF = 96
    A("v_lshrrev_b32 v12, 2, v4"); A("v_lshl_add_u32 v12, v3, 3, v12")
    A("v_lshlrev_b32 v15, 7, v12"); A("v_lshl_add_u32 v15, v11, 3, v15")
    A(f"v_add_u32 v15, {L_WQ}, v15")
    A("s_mov_b32 exec_hi, 0")
    A(f"global_load_dword v14, v13, s[26:27] {pflags}")
    A("s_mov_b64 exec, -1")
    A("s_waitcnt lgkmcnt(0)")
    A("s_cmp_eq_u32 s3, 0")
    A("s_cbranch_scc0 L_hf")

    for s in range(4): A(f"ds_read_b128 v[{XF+4*s}:{XF+4*s+3}], v5 offset:{L_XN + 64*s}")
    A("s_lshl_b32 s72, s28, 15"); A("s_lshl_b32 s73, s30, 11"); A("s_add_u32 s72, s72, s73")
    A("s_lshl_b32 s73, s31, 8"); A("s_add_u32 s72, s72, s73"); A(f"s_add_u32 s72, s72, {WS_QBOX}")
    A("v_lshlrev_b32 v5, 13, v11"); A("v_lshl_add_u32 v5, v3, 4, v5"); A("v_add_u32 v5, s72, v5")
    stamp()
    A("s_waitcnt vmcnt(2)")
    stamp()
    tile_reads(L_WQ, 4, WF)
    A("s_waitcnt lgkmcnt(0)")
    tile_mfma(64, 4, WF, XF)
    A("s_lshl_b32 s62, s28, 2"); A("s_add_u32 s62, s62, s30")
    A("s_lshl_b32 s72, s62, 13"); A(f"s_add_u32 s72, s72, {WS_QBOX + 4096}")
    A("v_bfe_u32 v8, v0, 2, 2"); A("v_lshlrev_b32 v8, 9, v8")
    A("v_lshl_add_u32 v8, v3, 7, v8"); A("v_lshl_add_u32 v8, v11, 5, v8"); A("v_add_u32 v8, s72, v8")
    for k in range(16): A(f"v_and_or_b32 v{64+k}, v{64+k}, v2, {TAU[k&3]}")
    xcc_wait()
    ex16()
    publish([(5, 64+4*nt, nt*64) for nt in range(4)])
    A("s_mov_b64 exec, -1")
    stamp()
    if qdelay: A(f"s_sleep {qdelay}")
    poll([(32 + 8*kq + 4*hf, 8, kq*2048 - 4096 + 16*hf) for kq in range(4) for hf in range(2)], 6, 7, hsleep)
    for k in range(4): A(f"v_pk_add_f32 v[{32+2*k}:{33+2*k}], v[{32+2*k}:{33+2*k}], v[{40+2*k}:{41+2*k}]")
    for k in range(4): A(f"v_pk_add_f32 v[{48+2*k}:{49+2*k}], v[{48+2*k}:{49+2*k}], v[{56+2*k}:{57+2*k}]")
    for k in range(4): A(f"v_pk_add_f32 v[{32+2*k}:{33+2*k}], v[{32+2*k}:{33+2*k}], v[{48+2*k}:{49+2*k}]")
    for k in range(4): A(f"v_cvt_pk_bf16_f32 v{40+k}, v{32+2*k}, v{33+2*k}")
    A("v_lshlrev_b32 v5, 4, v0")
    A(f"ds_write_b128 v5, v[40:43] offset:{L_QF}")
    A("v_mov_b32 v16, s78")
    A("ds_write_b32 v1, v16")
    stamp()
    A("v_and_b32 v5, 31, v0"); A("v_lshlrev_b32 v6, 3, v5")
    A("s_lshl_b32 s72, s62, 9"); A(f"s_add_u32 s72, s72, {WS_SBOX}")
    A("v_lshl_add_u32 v8, v5, 4, s72")
    A("s_lshl_b32 s73, s31, 4"); A("s_add_u32 s73, s73, s72")
    A("v_lshrrev_b32 v9, 3, v5"); A("v_lshl_add_u32 v9, v9, 7, s73")
    A(f"s_mov_b32 s64, {hex(CSC)}")
    ldswait(1, 4, 8, 19)
    A(f"ds_read_b64 v[16:17], v6 offset:{L_ST}")
    A("s_waitcnt lgkmcnt(0)")
    A("v_mov_b32 v20, v16")
    allred8("v_max_f32", 20)
    A(f"v_and_or_b32 v20, v20, v2, {T0}")
    A("v_sub_f32 v21, v16, v20"); A("v_mul_f32 v21, s64, v21"); A("v_exp_f32 v21, v21"); A("v_mul_f32 v21, v21, v17")
    allred8("v_add_f32", 21)
    A(f"v_and_or_b32 v21, v21, v2, {T1}")
    A(f"v_mov_b32 v22, {T2}"); A(f"v_mov_b32 v23, {T3}")
    A("s_mov_b32 exec_lo, 0x01010101"); A("s_mov_b32 exec_hi, 0")
    publish([(9, 20, 0)])
    A("s_mov_b32 exec_lo, -1")
    stamp()
    if fdelay: A(f"s_sleep {fdelay}")
    poll([(24, 8, 0)], 6, 7, hsleep)
    A("v_mov_b32 v20, v24")
    allred8("v_max_f32", 20)
    A("v_sub_f32 v21, v24, v20"); A("v_mul_f32 v21, s64, v21"); A("v_exp_f32 v21, v21"); A("v_mul_f32 v21, v21, v25")
    allred8("v_add_f32", 21)
    A("v_sub_f32 v22, v16, v20"); A("v_mul_f32 v22, s64, v22"); A("v_exp_f32 v22, v22")
    A("v_rcp_f32 v21, v21")
    A("v_mul_f32 v22, v22, v21")
    A("v_lshlrev_b32 v5, 2, v5")
    A("s_mov_b32 exec_hi, 0")
    A(f"ds_write_b32 v5, v22 offset:{L_F}")
    A("s_waitcnt lgkmcnt(0)")
    stamp()
    dump_stamps(6, 7)
    A("s_endpgm")

    A.label("L_hf"); A.reset()
    nst[0] = 3
    A(f"s_mov_b32 s61, {hex(NLOG2E)}")
    A("s_mov_b32 s63, 0x07060302")
    A("s_cmp_lt_u32 s54, 28")
    A("s_cbranch_scc0 L_nodown")
    A("s_and_b32 s72, s55, 1"); A("s_lshl_b32 s72, s72, 7"); A("v_add_u32 v5, s72, v5")
    for s in range(2): A(f"ds_read_b128 v[{XF+4*s}:{XF+4*s+3}], v5 offset:{L_XN + 0x500 + 64*s}")
    A("s_lshl_b32 s72, s54, 14"); A("s_lshl_b32 s73, s55, 8"); A("s_add_u32 s72, s72, s73"); A(f"s_add_u32 s72, s72, {WS_GBOX + 4096}")
    A("v_lshrrev_b32 v6, 1, v3"); A("v_lshlrev_b32 v6, 11, v6"); A("v_lshl_add_u32 v6, v11, 5, v6")
    A("v_and_b32 v7, 1, v3"); A("v_lshl_add_u32 v6, v7, 4, v6"); A("v_add_u32 v6, s72, v6")
    A("v_add_u32 v7, 0x2000, v6")
    stamp()
    A("s_waitcnt vmcnt(1)")
    stamp()
    tile_reads(L_GA, 2, WF); tile_reads(L_UP, 2, WF + 32)
    A("s_waitcnt lgkmcnt(0)")
    tile_mfma(64, 2, WF, XF); tile_mfma(80, 2, WF + 32, XF)
    for k in range(32): A(f"v_and_or_b32 v{64+k}, v{64+k}, v2, {TAU[k&3]}")
    xcc_wait()
    ex16()
    publish([(6 + (nt >> 1), 64+16*mat+4*nt, (nt & 1) * 4096 - 4096 + mat*128) for mat in range(2) for nt in range(4)])
    A("s_mov_b64 exec, -1")
    dma(8, 44, 59, 8192, 8, L_DN, wflags)
    stamp()
    A("s_lshl_b32 s72, s54, 3"); A("s_add_u32 s65, s72, s55")
    A("s_lshl_b32 s72, s65, 11"); A(f"s_add_u32 s72, s72, {WS_GBOX}")
    A("v_lshrrev_b32 v5, 3, v0"); A("v_lshlrev_b32 v5, 8, v5"); A("v_and_b32 v8, 7, v0"); A("v_lshl_add_u32 v5, v8, 4, v5"); A("v_add_u32 v5, s72, v5")
    A("s_lshl_b32 s72, s65, 5"); A(f"s_add_u32 s72, s72, {WS_HBOX}")
    A("v_bfe_u32 v8, v0, 1, 2"); A("v_mul_u32_u24 v8, 7168, v8"); A("v_and_b32 v9, 1, v0"); A("v_lshl_add_u32 v8, v9, 4, v8"); A("v_add_u32 v8, s72, v8")
    if fdelay: A(f"s_sleep {fdelay}")
    poll([(20, 5, 0), (24, 5, 128)], 6, 7, hsleep)
    tile_reads(L_DN, 2, WF)
    for r in range(4): A(f"v_permlane32_swap_b32 v{20+r}, v{24+r}")
    for r in range(4): A(f"v_add_f32 v{20+r}, v{20+r}, v{24+r}")
    for r in range(4): A(f"v_mov_b32 v{24+r}, v{20+r}")
    for r in range(4): A(f"v_permlane16_swap_b32 v{20+r}, v{24+r}")
    for r in range(4): A(f"v_add_f32 v{20+r}, v{20+r}, v{24+r}")
    for r in range(4): A(f"v_add_f32_dpp v{20+r}, v{20+r}, v{20+r} row_ror:8 {DPP}")
    for r in range(4): A(f"v_cvt_pk_bf16_f32 v{20+r}, 0, v{20+r}")
    for r in range(4): A(f"v_permlane32_swap_b32 v{20+r}, v{24+r}")
    silu(28, 20, 4)
    for r in range(4): A(f"v_mul_f32 v{28+r}, v{28+r}, v{24+r}")
    for r in range(4): A(f"v_cvt_pk_bf16_f32 v{28+r}, 0, v{28+r}")
    for r in range(4): A(f"v_or_b32 v{28+r}, {TAU[r]}, v{28+r}")
    A("s_mov_b64 exec, 0xff")
    publish([(8, 28, 0)])
    A("s_mov_b64 exec, -1")
    stamp()
    A("s_lshl_b32 s72, s54, 8"); A(f"s_add_u32 s72, s72, {WS_HBOX}")
    A("v_mul_u32_u24 v5, 7168, v11"); A("v_lshl_add_u32 v5, v3, 5, v5"); A("v_add_u32 v5, s72, v5")
    ex16()
    if fdelay: A(f"s_sleep {fdelay}")
    poll([(32, 5, 0), (36, 5, 16), (40, 5, 128), (44, 5, 144)], 6, 7, hsleep)
    for k in range(8): A(f"v_perm_b32 v{48+k}, v{33+2*k}, v{32+2*k}, s63")
    A("s_waitcnt lgkmcnt(0)")
    tile_mfma(64, 2, WF, 48)
    A("s_lshl_b32 s72, s55, 15"); A("s_lshl_b32 s73, s54, 7"); A("s_add_u32 s72, s72, s73"); A(f"s_add_u32 s72, s72, {WS_FIN}")
    A("v_lshlrev_b32 v5, 5, v11"); A("v_lshrrev_b32 v6, 1, v3"); A("v_lshl_add_u32 v5, v6, 12, v5")
    A("v_and_b32 v6, 1, v3"); A("v_lshl_add_u32 v5, v6, 4, v5"); A("v_add_u32 v5, s72, v5")
    for nt in range(1, 4): A(f"v_add_u32 v{5+nt}, {nt*8192}, v5")
    for k in range(16): A(f"v_and_or_b32 v{64+k}, v{64+k}, v2, {TAU[k&3]}")
    ex16()
    for nt in range(4): A(f"global_store_dwordx4 v{5+nt}, v[{64+4*nt}:{67+4*nt}], s[26:27] sc1")
    A("s_mov_b64 exec, -1")
    A.label("L_nodown")
    stamp()
    dump_stamps(6, 7)
    A("s_endpgm")

    A.raw(".p2align 6")
    A.label("L_kv"); A.reset()
    nst[0] = 1
    KR, VR = 32, 96
    DT = 16
    QF = 12
    A("s_sub_u32 s54, s3, 2")
    A("v_bfe_u32 v10, v0, 2, 2")
    A("v_lshlrev_b32 v4, 4, v11"); A("v_lshl_add_u32 v4, v10, 8, v4"); A("v_lshl_add_u32 v4, v3, 6, v4")
    A("v_lshlrev_b32 v5, 4, v0")
    A("s_lshl_b32 s55, s30, 3"); A("s_add_u32 s55, s55, s28"); A("s_lshl_b32 s55, s55, 22")
    A("s_lshl_b32 s72, s31, 17"); A("s_add_u32 s55, s55, s72"); A("s_add_u32 s55, s55, 0x300000")
    A("s_lshl_b32 s72, s31, 12"); A("s_lshl_b32 s73, s54, 10"); A("s_add_u32 s74, s72, s73")
    def koff(i):
        A(f"s_add_u32 s{56+i}, s74, {i*8192}"); A(f"s_and_b32 s{56+i}, s{56+i}, 0x1ffff"); A(f"s_add_u32 s{56+i}, s{56+i}, s55")
    for i in range(cap): koff(i)
    A("s_waitcnt lgkmcnt(0)")
    stamp()
    srd(32, 6, "0x8000000"); srd(36, 8, "0x8000000")
    issued = []
    def ldK(i):
        A(f"buffer_load_dwordx4 v[{KR+4*i}:{KR+4*i+3}], v4, s[32:35], s{56+i} offen {kvflags}"); issued.append(("K", i))
    def ldV(i):
        A(f"buffer_load_dwordx4 v[{VR+4*i}:{VR+4*i+3}], v5, s[36:39], s{56+i} offen {kvflags}"); issued.append(("V", i))
    def waitfor(tag):
        n = len(issued) - 1 - issued.index(tag)
        A(f"s_waitcnt vmcnt({n})")
    def ldWO():
        for t in range(2):
            A(f"s_add_u32 s72, s75, {t*65536}")
            A(f"s_add_u32 m0, s76, {t*8192}")
            A(f"buffer_load_dwordx4 v6, s[40:43], s72 offen {wflags} lds"); issued.append(("W", t))
    for i in range(cap): ldK(i)
    A("s_load_dword s52, s[26:27], 0")
    A("s_barrier")
    srd(40, 12, "0x400000")
    A("s_lshl_b32 s77, s28, 2"); A("s_add_u32 s77, s77, s30")
    A("s_lshl_b32 s75, s77, 17"); A("s_lshl_b32 s72, s54, 13"); A("s_add_u32 s75, s75, s72")
    A("s_lshl_b32 s72, s31, 7"); A("s_add_u32 s75, s75, s72")
    A("s_lshl_b32 s76, s54, 10"); A(f"s_add_u32 s76, s76, {L_WO}")
    A("s_and_b32 s72, s54, 1"); A("s_lshl_b32 s72, s72, 2")
    A("v_and_b32 v6, 1, v3"); A("v_lshlrev_b32 v6, 1, v6"); A("v_or_b32 v6, s72, v6")
    A("v_and_b32 v7, 7, v0"); A("v_xor_b32 v6, v6, v7"); A("v_lshlrev_b32 v6, 4, v6")
    A("v_lshrrev_b32 v7, 3, v0"); A("v_lshl_add_u32 v6, v7, 10, v6")
    A("v_and_b32 v7, 1, v0"); A("v_lshlrev_b32 v7, 4, v7"); A("v_mov_b32 v8, 0xffff"); A("v_lshlrev_b32 v7, v7, v8")
    A("v_cmp_gt_u32 vcc, 2, v11")
    A("v_cndmask_b32 v8, 0, v7, vcc")
    A("v_cndmask_b32 v9, v7, 0, vcc")
    A(f"s_mov_b32 s79, {hex(CSC)}")
    seq = [("K", i) for i in range(cap, 16)] + [("V", i) for i in range(nv_early)]
    if wo_pos == "early": seq = seq[:4] + [("W", 0)] + seq[4:]
    for kind, i in seq:
        if kind == "K": koff(i)
        if kind == "W": ldWO(); continue
        A(f"s_waitcnt vmcnt({cap-1})")
        (ldK if kind == "K" else ldV)(i)
    waitfor(("K", 15))
    A("s_waitcnt lgkmcnt(0)")
    tags_from_epoch()
    stamp()
    A(f"v_mov_b32 v1, {L_FLAG}")
    ldswait(1, 0, None, 7)
    A("v_readfirstlane_b32 s78, v7")
    A(f"ds_read_b128 v[{QF}:{QF+3}], v5 offset:{L_QF}")
    A("s_waitcnt lgkmcnt(0)")
    stamp()
    nv = nv_early
    for gq in range(4):
        for t in range(4):
            i = 4*gq + t
            A(f"v_mfma_f32_16x16x32_bf16 v[{DT+4*t}:{DT+4*t+3}], v[{KR+4*i}:{KR+4*i+3}], v[{QF}:{QF+3}], 0")
        if nv < nv_early + nv_mid and nv < 16 and gq in (0, 2):
            ldV(nv); nv += 1
        for c in range(4):
            for t in range(4):
                i = 4*gq + t
                z = KR + 4*i
                if c == 0: A(f"v_mov_b32_dpp v{z}, v{DT+4*t} quad_perm:[0,0,0,0] {DPP}")
                else: A(f"v_add_f32_dpp v{z}, v{DT+4*t+c}, v{z} quad_perm:[{c},{c},{c},{c}] {DPP}")
    Z = lambda i: KR + 4*i
    A(f"v_max3_f32 v16, v{Z(0)}, v{Z(1)}, v{Z(2)}"); A(f"v_max3_f32 v17, v{Z(3)}, v{Z(4)}, v{Z(5)}")
    A(f"v_max3_f32 v18, v{Z(6)}, v{Z(7)}, v{Z(8)}"); A(f"v_max3_f32 v19, v{Z(9)}, v{Z(10)}, v{Z(11)}")
    A(f"v_max3_f32 v16, v16, v{Z(12)}, v{Z(13)}"); A(f"v_max3_f32 v17, v17, v{Z(14)}, v{Z(15)}")
    A("v_max3_f32 v16, v16, v17, v18"); A("v_max_f32 v16, v16, v19")
    allred_rows("v_max_f32", 16, 18)
    A("v_mul_f32 v18, s79, v16")
    for i in range(16): A(f"v_fma_f32 v{Z(i)}, v{Z(i)}, s79, -v18")
    for i in range(16): A(f"v_exp_f32 v{Z(i)}, v{Z(i)}")
    while nv < nv_early + nv_mid and nv < 16:
        ldV(nv); nv += 1
    for k in range(4): A(f"v_add_f32 v{20+k}, v{Z(k)}, v{Z(k+4)}")
    for k in range(4): A(f"v_add_f32 v{20+k}, v{20+k}, v{Z(k+8)}")
    for k in range(4): A(f"v_add_f32 v{20+k}, v{20+k}, v{Z(k+12)}")
    A("v_add_f32 v20, v20, v21"); A("v_add_f32 v22, v22, v23"); A("v_add_f32 v17, v20, v22")
    allred_rows("v_add_f32", 17, 18)
    A("s_lshl_b32 s72, s54, 3")
    A("v_lshl_add_u32 v7, v10, 6, s72")
    A(f"ds_write_b64 v7, v[16:17] offset:{L_ST}")
    A("v_mov_b32 v7, 1")
    A("s_mov_b64 exec, 1")
    A("ds_add_u32 v1, v7 offset:4")
    A("s_mov_b64 exec, -1")
    for i in range(16): A(f"v_cvt_pk_bf16_f32 v{Z(i)+1}, v{Z(i)}, v{Z(i)}")
    for i in range(16):
        A(f"v_and_b32 v{Z(i)+2}, v{Z(i)+1}, v8"); A(f"v_and_b32 v{Z(i)+3}, v{Z(i)+1}, v9")
    stamp()
    O0, O1 = 16, 20
    def tail_setup():
        A(f"s_mul_i32 s72, s54, {ORP}"); A("v_add_u32 v24, s72, v5")
        A(f"v_mul_u32_u24 v25, {2*ORP}, v11")
        A("v_bfe_u32 v7, v0, 2, 1"); A("v_lshl_add_u32 v25, v7, 10, v25")
        A("v_lshrrev_b32 v7, 3, v0"); A("v_lshl_add_u32 v25, v7, 4, v25")
        A("s_lshl_b32 s72, s54, 7"); A("v_add_u32 v25, s72, v25")
        A("s_lshr_b32 s73, s54, 1")
        A("s_lshl_b32 s72, s73, 5"); A("v_lshl_add_u32 v26, v11, 3, s72")
        A("s_lshl_b32 s72, s77, 3"); A("s_add_u32 s72, s72, s31"); A("s_lshl_b32 s72, s72, 11")
        A("s_lshl_b32 s45, s54, 8"); A("s_add_u32 s72, s72, s45"); A(f"s_add_u32 s72, s72, {WS_OBOX}")
        A("v_lshrrev_b32 v7, 2, v0"); A("v_lshl_add_u32 v27, v7, 4, s72")
        A("s_lshl_b32 s44, s28, 2"); A("s_add_u32 s72, s44, s73"); A("s_lshl_b32 s72, s72, 14"); A("s_lshl_b32 s45, s30, 9"); A("s_add_u32 s72, s72, s45")
        A("s_and_b32 s45, s54, 1"); A("s_lshl_b32 s45, s45, 8"); A("s_add_u32 s72, s72, s45"); A(f"s_add_u32 s72, s72, {WS_OBOX}")
        A("v_lshrrev_b32 v7, 3, v0"); A("v_lshlrev_b32 v28, 11, v7"); A("v_and_b32 v7, 7, v0"); A("v_lshl_add_u32 v28, v7, 4, v28"); A("v_add_u32 v28, s72, v28")
        A(f"s_mul_i32 s72, s73, {OBP}"); A("s_lshr_b32 s45, s45, 1"); A("s_add_u32 s72, s72, s45")
        A("v_lshlrev_b32 v29, 3, v7"); A("v_lshrrev_b32 v7, 1, v3"); A("v_lshl_add_u32 v29, v7, 6, v29")
        A("v_and_b32 v7, 1, v3"); A("v_lshl_add_u32 v29, v7, 2, v29"); A("v_add_u32 v29, s72, v29")
        A(f"v_mul_u32_u24 v30, {OBP}, v11"); A("v_lshl_add_u32 v30, v3, 4, v30")
        A("v_bfe_u32 v31, v0, 3, 1"); A("v_lshl_or_b32 v7, v7, 1, v31"); A("s_and_b32 s45, s54, 3"); A("v_xor_b32 v7, s45, v7"); A("v_lshlrev_b32 v31, 5, v7")
        A("v_lshl_add_u32 v7, v3, 3, v10"); A("v_lshl_add_u32 v31, v7, 7, v31"); A("v_lshl_add_u32 v31, v11, 3, v31"); A(f"v_add_u32 v31, {L_WO}, v31")
        A("s_lshl_b32 s72, s31, 3"); A("s_lshl_b32 s45, s45, 1"); A("s_add_u32 s72, s72, s45"); A("s_lshl_b32 s72, s72, 12")
        A("s_lshl_b32 s45, s77, 7"); A("s_add_u32 s72, s72, s45"); A(f"s_add_u32 s72, s72, {WS_SIN}")
        A("v_lshlrev_b32 v1, 5, v11"); A("v_lshrrev_b32 v7, 1, v3"); A("v_lshl_add_u32 v1, v7, 12, v1")
        A("v_and_b32 v7, 1, v3"); A("v_lshl_add_u32 v1, v7, 4, v1"); A("v_add_u32 v1, s72, v1")
        A("s_lshl_b32 s72, s2, 12"); A(f"s_add_u32 s72, s72, {WS_SIN}"); A("v_lshl_add_u32 v4, v0, 4, s72")
        out_index(8, 7)
    wo_done = wo_pos == "early"
    c2 = cap2 or cap
    setup_done = False
    for i in range(16):
        waitfor(("V", i))
        while nv < 16 and nv - i - 1 < c2:
            ldV(nv); nv += 1
        if nv == 16 and not wo_done and 16 - i - 1 < c2:
            ldWO(); wo_done = True
        A(f"v_mfma_f32_16x16x16_bf16 v[{O0}:{O0+3}], v[{Z(i)+2}:{Z(i)+3}], v[{VR+4*i}:{VR+4*i+1}], " + ("0" if i == 0 else f"v[{O0}:{O0+3}]"))
        A(f"v_mfma_f32_16x16x16_bf16 v[{O1}:{O1+3}], v[{Z(i)+2}:{Z(i)+3}], v[{VR+4*i+2}:{VR+4*i+3}], " + ("0" if i == 0 else f"v[{O1}:{O1+3}]"))
        if i == 8: tail_setup()
    stamp()
    A(f"ds_write_b128 v24, v[{O0}:{O0+3}] offset:{L_ORED}")
    A(f"ds_write_b128 v24, v[{O1}:{O1+3}] offset:{L_ORED+1024}")
    A("s_waitcnt lgkmcnt(0)")
    A("s_barrier")
    A(f"ds_read_b64 v[12:13], v26 offset:{L_F}")
    A(f"ds_read_b128 v[32:35], v25 offset:{L_ORED}")
    A(f"ds_read_b128 v[36:39], v25 offset:{L_ORED+ORP}")
    A("s_waitcnt lgkmcnt(1)")
    for k in range(4): A(f"v_mul_f32 v{32+k}, v{32+k}, v12")
    A("s_waitcnt lgkmcnt(0)")
    for k in range(4): A(f"v_fmac_f32 v{32+k}, v{36+k}, v13")
    for qp in ("[1,0,3,2]", "[2,3,0,1]"):
        for k in range(4): A(f"v_add_f32_dpp v{32+k}, v{32+k}, v{32+k} quad_perm:{qp} {DPP}")
    for k in range(4): A(f"v_and_or_b32 v{32+k}, v{32+k}, v2, {TAU[k]}")
    A("s_mov_b32 exec_lo, 0x11111111"); A("s_mov_b32 exec_hi, 0x11111111")
    publish([(27, 32, 0)])
    A("s_mov_b64 exec, -1")
    stamp()
    poll([(40, 28, 0), (44, 28, 128)], 6, 7, psleep)
    stamp()
    for k in range(4): A(f"v_permlane32_swap_b32 v{40+k}, v{44+k}")
    for k in range(4): A(f"v_add_f32 v{40+k}, v{40+k}, v{44+k}")
    for k in range(2): A(f"v_permlane16_swap_b32 v{40+k}, v{42+k}")
    for k in range(2): A(f"v_add_f32 v{40+k}, v{40+k}, v{42+k}")
    for k in range(2): A(f"v_add_f32_dpp v{40+k}, v{40+k}, v{40+k} row_ror:8 {DPP}")
    A("v_cvt_pk_bf16_f32 v40, v40, v41")
    A(f"ds_write_b32 v29, v40 offset:{L_OB}")
    A("s_waitcnt lgkmcnt(0)")
    A("s_barrier")
    A("s_cmp_gt_u32 s54, 3")
    A("s_cbranch_scc1 L_fin")
    for s in range(4):
        A(f"ds_read_b128 v[{48+4*s}:{51+4*s}], v30 offset:{L_OB + 64*s}")
        for t2 in range(2):
            A(f"ds_read_b64_tr_b16 v[{64+4*s+2*t2}:{65+4*s+2*t2}], v31 offset:{s*4096 + t2*512}")
    for s in range(4):
        A(f"s_waitcnt lgkmcnt({9-3*s})")
        A(f"v_mfma_f32_16x16x32_bf16 v[44:47], v[{64+4*s}:{67+4*s}], v[{48+4*s}:{51+4*s}], " + ("0" if s == 0 else "v[44:47]"))
    ex16()
    for k in range(4): A(f"v_and_or_b32 v{44+k}, v{44+k}, v2, {TAU[k]}")
    A("global_store_dwordx4 v1, v[44:47], s[26:27] sc1")
    stamp()
    A("s_branch L_kvdone")
    A.label("L_fin"); A.reset()
    A("s_cmp_lg_u32 s54, 7")
    A("s_cbranch_scc1 L_kvdone")
    A("s_cmp_lt_u32 s2, 64")
    A("s_cbranch_scc0 L_kvdone")
    A("global_load_ushort v65, v8, s[4:5]")
    A(f"s_mov_b32 s61, {hex(NLOG2E)}")
    for k in range(4): A(f"v_mov_b32 v{60+k}, {TAU[k]}")
    A(f"v_add_u32 v9, {WS_FIN - WS_SIN}, v4")
    poll([(60, 9, 3072), (48, 9, 0), (52, 9, 1024), (56, 9, 2048)], 6, 7, psleep, half_last=True)
    reduce_f(48)
    A("v_cvt_pk_bf16_f32 v48, 0, v48")
    silu(64, 48, 1)
    A("v_lshlrev_b32 v65, 16, v65")
    poll([(32, 4, 0), (36, 4, 1024), (40, 4, 2048), (44, 4, 3072)], 6, 7, psleep)
    stamp()
    reduce_f(32)
    A("v_cvt_pk_bf16_f32 v32, 0, v32")
    A("v_mul_f32 v32, v32, v64")
    A("v_cvt_pk_bf16_f32 v32, 0, v32")
    A("v_add_f32 v32, v32, v65")
    A("v_cvt_pk_bf16_f32 v32, v32, v32")
    A("s_mov_b32 exec_lo, 0x00ff00ff"); A("s_mov_b32 exec_hi, 0x00ff00ff")
    A("global_store_short v8, v32, s[22:23]")
    A("s_cmp_lg_u32 s2, 0")
    A("s_cbranch_scc1 L_kvdone")
    A("s_mov_b64 exec, 1")
    A("v_mov_b32 v5, 0"); A("v_mov_b32 v6, s52")
    A("global_store_dword v5, v6, s[26:27] sc1")
    if padto or padcyc:
        A.label("L_pad")
        A("s_memrealtime s[98:99]" if padto else "s_memtime s[98:99]")
        A("s_waitcnt lgkmcnt(0)")
        A("s_sub_u32 s98, s98, s96")
        A(f"s_cmp_lt_u32 s98, {padto or padcyc}")
        A("s_cbranch_scc1 L_pad")
    A.label("L_kvdone")
    if stamps:
        A("s_waitcnt vmcnt(0)")
        stamp()
        dump_stamps(6, 7)
    A.label("L_end")
    A("s_endpgm")
    A.raw('.section .rodata,"a"'); A.raw(".p2align 6"); A.raw(f".amdhsa_kernel {NAME}_kernel")
    A.raw("  .amdhsa_next_free_vgpr 160"); A.raw("  .amdhsa_next_free_sgpr 102"); A.raw("  .amdhsa_accum_offset 160")
    A.raw("  .amdhsa_group_segment_fixed_size 0"); A.raw("  .amdhsa_kernarg_size 96"); A.raw("  .amdhsa_user_sgpr_count 2")
    A.raw("  .amdhsa_user_sgpr_kernarg_segment_ptr 1"); A.raw("  .amdhsa_system_sgpr_workgroup_id_x 1"); A.raw(".end_amdhsa_kernel")
    return A.text()

if __name__ == "__main__":
    out = sys.argv[1] if len(sys.argv) > 1 else f"cdna_kernels/{NAME}.s"
    kw = {}
    for a in sys.argv[2:]:
        k, v = a.split("=")
        try: v = int(v, 0)
        except ValueError: pass
        kw[k] = v
    open(out, "w").write(gen(**kw))
```

```python
import sys, struct, math
sys.path.insert(0, "work")
from asmlib import Asm

NAME = "recurrent_scan__sliding_block_cached__swiglu_ffn__decode"

def f2u(x): return struct.unpack("<I", struct.pack("<f", x))[0]

WS_E    = 0x0
WS_SBOX = 0x4000
WS_HBOX = 0x8000
WS_GBOX = 0x10000
WS_OBOX = 0x80000
WS_QBOX = 0x100000
WS_SIN  = 0x140000
WS_FIN  = 0x180000
WS_STAMP = 0x400000
L_XN, XNP = 0x0, 320
L_FLAG = 0xA00
FL_Q, FL_ST, FL_MODE, FL_F, FL_H, FL_WO, FL_O, FL_OB, FL_WQ, FL_GU, FL_SP, FL_OP = 0, 4, 8, 12, 16, 20, 24, 28, 32, 36, 40, 44
L_ST = 0xB00
L_F  = 0xC00
L_QF = 0xD00
L_OB, OBP = 0x1100, 320
L_HB = 0x1800
L_WQ = 0x2000
L_GA = 0x6000
L_UP = 0x8000
L_DN = 0xA000
L_WO = 0xC000
L_ORED, ORP = 0x10000, 2080
L_TOTAL = 0x14400
NH = 4
NW = 12

DPP = "row_mask:0xf bank_mask:0xf"

def gen(stamps=False, cap=3, wflags="nt", kvflags="nt", nv_early=3, nv_mid=1, spin=1 << 20,
        psleep=0, hsleep=4, osleep=1, cap2=None, pflags='sc1', xtries=24, qdelay=48, fdelay=40, stdelay=8, early=True, force_slow=False,
        padto=0, xpoll='v', vp_at=10, fin_at="o", touch=False, orsleep=0, gate=True, sdelay=4, ppre=True, dbg=0):
    A = Asm()
    A.raw(f"; @launch grid=(256,1,1) block=({64*NW},1,1) lds={L_TOTAL}")
    A.raw('.amdgcn_target "amdgcn-amd-amdhsa--gfx950"')
    A.raw(".text"); A.raw(f".globl {NAME}_kernel"); A.raw(".p2align 8"); A.raw(f".type {NAME}_kernel,@function")
    A.label(f"{NAME}_kernel")
    def stamp(k):
        if stamps:
            assert k < 11
            A(f"s_memrealtime s[{80+2*k}:{81+2*k}]")
    def dump_stamps():
        if not stamps: return
        A("s_sleep 120")
        A("s_waitcnt lgkmcnt(0)")
        A("s_mov_b64 exec, 1")
        A(f"s_mul_i32 s72, s2, {NW}"); A("s_add_u32 s72, s72, s3"); A("s_lshl_b32 s72, s72, 6"); A(f"s_add_u32 s72, s72, {WS_STAMP}")
        A("v_mov_b32 v7, s72")
        for k in range(11):
            A(f"v_mov_b32 v6, s{80+2*k}")
            A(f"global_store_dword v7, v6, s[26:27] offset:{4*k}")
    T0, T1, T2, T3 = "s48", "s49", "s50", "s51"
    TAU = [T0, T1, T2, T3]
    def tags_from_epoch():
        A("s_add_u32 s52, s52, 1")
        A("s_and_b32 s48, s52, 0xff")
        A("s_xor_b32 s49, s48, 0x55"); A("s_xor_b32 s50, s48, 0xaa"); A("s_xor_b32 s51, s48, 0xff")
    uid = [0]
    def nid():
        uid[0] += 1; return uid[0]
    def poll(loads, acc, acc2, sleep, gate=None, first_mask=None):
        n = nid()
        A(f"s_branch L_poll{n}")
        A.label(f"L_pollr{n}")
        if sleep: A(f"s_sleep {sleep}")
        if gate: gate()
        A("s_add_u32 s53, s53, 1")
        A(f"s_cmp_gt_u32 s53, {spin}")
        A("s_cbranch_scc1 L_end")
        A.label(f"L_poll{n}")
        for q, (d, va, off) in enumerate(loads):
            if first_mask is not None and q == 0:
                A("s_mov_b32 s72, exec_hi"); A(f"s_and_b32 exec_hi, exec_hi, {hex(first_mask)}")
            A(f"global_load_dwordx4 v[{d}:{d+3}], v{va}, s[26:27] offset:{off} {pflags}")
            if first_mask is not None and q == 0:
                A("s_mov_b32 exec_hi, s72")
        for q, (d, va, off) in enumerate(loads):
            A(f"s_waitcnt vmcnt({len(loads)-1-q})")
            if q == 0:
                A(f"v_xor_b32 v{acc}, {T0}, v{d}")
                A(f"v_xor_b32 v{acc2}, {T1}, v{d+1}")
            else:
                A(f"v_bitop3_b32 v{acc}, v{acc}, v{d}, {T0} bitop3:0xf6")
                A(f"v_bitop3_b32 v{acc2}, v{acc2}, v{d+1}, {T1} bitop3:0xf6")
            A(f"v_bitop3_b32 v{acc}, v{acc}, v{d+2}, {T2} bitop3:0xf6")
            A(f"v_bitop3_b32 v{acc2}, v{acc2}, v{d+3}, {T3} bitop3:0xf6")
        A(f"v_bitop3_b32 v{acc}, v{acc}, v{acc2}, v2 bitop3:0x54")
        A(f"v_cmp_ne_u32 vcc, 0, v{acc}")
        A("s_and_b64 exec, exec, vcc")
        A(f"s_cbranch_scc1 L_pollr{n}")
        A("s_mov_b64 exec, -1")
    def publish(stores):
        n = nid()
        A("s_cmp_eq_u32 s78, 1")
        A(f"s_cbranch_scc0 L_ps{n}")
        for va, d, off in stores: A(f"global_store_dwordx4 v{va}, v[{d}:{d+3}], s[26:27] offset:{off}")
        A.label(f"L_pd{n}")
        slow.append((n, stores))
    slow = []
    def ldswait(off, val, vt, sleep=1):
        n = nid()
        A(f"s_branch L_lw{n}")
        A.label(f"L_lwr{n}")
        if sleep: A(f"s_sleep {sleep}")
        A("s_add_u32 s53, s53, 1")
        A(f"s_cmp_gt_u32 s53, {spin}")
        A("s_cbranch_scc1 L_end")
        A.label(f"L_lw{n}")
        A(f"ds_read_b32 v{vt}, v1 offset:{off}")
        A("s_waitcnt lgkmcnt(0)")
        A(f"v_cmp_ne_u32 vcc, {val}, v{vt}" if val else f"v_cmp_eq_u32 vcc, 0, v{vt}")
        A(f"s_cbranch_vccnz L_lwr{n}")
    def ldsinc(off, vt):
        A(f"v_mov_b32 v{vt}, 1")
        A("s_mov_b64 exec, 1")
        A(f"ds_add_u32 v1, v{vt} offset:{off}")
        A("s_mov_b64 exec, -1")
    def getmode(vt):
        ldswait(FL_MODE, None, vt)
        A(f"v_readfirstlane_b32 s78, v{vt}")
    def srd(s, lo, size):
        A(f"s_mov_b32 s{s}, s{lo}"); A(f"s_mov_b32 s{s+1}, s{lo+1}")
        A(f"s_mov_b32 s{s+2}, {size}"); A(f"s_mov_b32 s{s+3}, 0x20000")
    def allred8(op, v):
        A(f"{op}_dpp v{v}, v{v}, v{v} quad_perm:[1,0,3,2] {DPP}")
        A(f"{op}_dpp v{v}, v{v}, v{v} quad_perm:[2,3,0,1] {DPP}")
        A(f"{op}_dpp v{v}, v{v}, v{v} row_half_mirror {DPP}")
    def allred_rows(op, v, t):
        A(f"v_mov_b32 v{t}, v{v}"); A(f"v_permlane16_swap_b32 v{v}, v{t}"); A(f"{op} v{v}, v{v}, v{t}")
        A(f"v_mov_b32 v{t}, v{v}"); A(f"v_permlane32_swap_b32 v{v}, v{t}"); A(f"{op} v{v}, v{v}, v{t}")
    def reduce32(L):
        for a in L: A(f"v_permlane32_swap_b32 v{a}, v{a+2}"); A(f"v_permlane32_swap_b32 v{a+1}, v{a+3}")
        for a in L: A(f"v_pk_add_f32 v[{a}:{a+1}], v[{a}:{a+1}], v[{a+2}:{a+3}]")
        for a in L: A(f"v_permlane16_swap_b32 v{a}, v{a+1}")
        for a in L: A(f"v_add_f32 v{a}, v{a}, v{a+1}")
        for r in (8, 4, 2):
            for a in L: A(f"v_add_f32_dpp v{a}, v{a}, v{a} row_ror:{r} {DPP}")
    def reduce_f(L):
        for a in L:
            for k in range(2): A(f"v_pk_add_f32 v[{a+2*k}:{a+2*k+1}], v[{a+2*k}:{a+2*k+1}], v[{a+4+2*k}:{a+4+2*k+1}]")
            for k in range(2): A(f"v_pk_add_f32 v[{a+8+2*k}:{a+8+2*k+1}], v[{a+8+2*k}:{a+8+2*k+1}], v[{a+12+2*k}:{a+12+2*k+1}]")
        for a in L:
            for k in range(2): A(f"v_pk_add_f32 v[{a+2*k}:{a+2*k+1}], v[{a+2*k}:{a+2*k+1}], v[{a+8+2*k}:{a+8+2*k+1}]")
        for a in L: A(f"v_permlane32_swap_b32 v{a}, v{a+2}"); A(f"v_permlane32_swap_b32 v{a+1}, v{a+3}")
        for a in L: A(f"v_pk_add_f32 v[{a}:{a+1}], v[{a}:{a+1}], v[{a+2}:{a+3}]")
        for a in L: A(f"v_permlane16_swap_b32 v{a}, v{a+1}")
        for a in L: A(f"v_add_f32 v{a}, v{a}, v{a+1}")
        for a in L: A(f"v_add_f32_dpp v{a}, v{a}, v{a} row_ror:8 {DPP}")
    def dma(vaddr, srdn, sbase, step, n, ldsbase, flags):
        for t in range(n):
            A(f"s_add_u32 s72, s{sbase}, {t*step}")
            A(f"s_mov_b32 m0, {ldsbase + t*1024}")
            A(f"buffer_load_dwordx4 v{vaddr}, s[{srdn}:{srdn+3}], s72 offen {flags} lds")
    def silu(dst, src, n):
        for r in range(n): A(f"v_mul_f32 v{dst+r}, {hex(NLOG2E)}, v{src+r}")
        for r in range(n): A(f"v_exp_f32 v{dst+r}, v{dst+r}")
        for r in range(n): A(f"v_add_f32 v{dst+r}, 1.0, v{dst+r}")
        for r in range(n): A(f"v_rcp_f32 v{dst+r}, v{dst+r}")
        for r in range(n): A(f"v_mul_f32 v{dst+r}, v{dst+r}, v{src+r}")
        for r in range(n): A(f"v_cvt_pk_bf16_f32 v{dst+r}, 0, v{dst+r}")
    def tile_reads(base, nks, dst):
        for nt in range(4):
            for s in range(nks):
                for t2 in range(2):
                    q = dst + 4*(nt*nks + s) + 2*t2
                    A(f"ds_read_b64_tr_b16 v[{q}:{q+1}], v15 offset:{base + s*4096 + t2*512 + nt*32}")
    def tile_mfma(acc, nks, wf, xf):
        for s in range(nks):
            for nt in range(4):
                q = wf + 4*(nt*nks + s)
                A(f"v_mfma_f32_16x16x32_bf16 v[{acc+4*nt}:{acc+4*nt+3}], v[{q}:{q+3}], v[{xf+4*s}:{xf+4*s+3}], " + ("0" if s == 0 else f"v[{acc+4*nt}:{acc+4*nt+3}]"))
    def ex16():
        A("s_mov_b32 exec_lo, 0x000f000f"); A("s_mov_b32 exec_hi, 0x000f000f")
    CSC = f2u(math.log2(math.e) / math.sqrt(128.0))
    NLOG2E = f2u(-math.log2(math.e))

    stamp(0)
    if padto: A("s_memrealtime s[96:97]")
    A("s_cmp_ge_u32 s2, 256")
    A("s_cbranch_scc1 L_end")
    A("s_load_dwordx16 s[4:19], s[0:1], 0")
    A("s_load_dwordx8 s[20:27], s[0:1], 64")
    A("v_lshrrev_b32 v1, 6, v0")
    A("v_and_b32 v0, 63, v0")
    A("v_readfirstlane_b32 s3, v1")
    A("s_and_b32 s28, s2, 7")
    A("s_lshr_b32 s29, s2, 3")
    A("s_lshr_b32 s30, s2, 6")
    A("s_and_b32 s31, s29, 7")
    A("s_lshl_b32 s77, s28, 2"); A("s_add_u32 s77, s77, s30")
    A("s_lshr_b32 s76, s29, 2")
    A("s_and_b32 s75, s29, 3"); A("s_lshl_b32 s75, s75, 3"); A("s_add_u32 s75, s75, s28")
    A("s_mov_b32 s53, 0")
    A(f"v_mov_b32 v1, {L_FLAG}")
    A("v_mov_b32 v2, 0xffffff00")
    A("v_lshrrev_b32 v3, 4, v0")
    A("v_and_b32 v11, 3, v0")
    A("v_bfe_u32 v10, v0, 2, 2")
    A(f"s_cmp_lt_u32 s3, {NH}")
    A("s_cbranch_scc1 L_help")

    KR, VR = 32, 96
    DT = 16
    QF = 12
    A(f"s_sub_u32 s54, s3, {NH}")
    A("v_lshlrev_b32 v4, 4, v11"); A("v_lshl_add_u32 v4, v10, 8, v4"); A("v_lshl_add_u32 v4, v3, 6, v4")
    A("v_lshlrev_b32 v5, 4, v0")
    A("s_lshl_b32 s55, s30, 3"); A("s_add_u32 s55, s55, s28"); A("s_lshl_b32 s55, s55, 22")
    A("s_lshl_b32 s72, s31, 17"); A("s_add_u32 s55, s55, s72"); A("s_add_u32 s55, s55, 0x300000")
    A("s_add_u32 s72, s31, s28"); A("s_lshl_b32 s72, s72, 12"); A("s_lshl_b32 s74, s54, 10"); A("s_add_u32 s74, s74, s72")
    A("s_lshl_b32 s72, s30, 15"); A("s_add_u32 s74, s74, s72")
    def koff(i):
        A(f"s_add_u32 s{56+i}, s74, {i*8192}"); A(f"s_and_b32 s{56+i}, s{56+i}, 0x1ffff"); A(f"s_add_u32 s{56+i}, s{56+i}, s55")
    A("v_lshrrev_b32 v9, 3, v0"); A("v_and_b32 v8, 7, v0"); A("v_lshlrev_b32 v8, 4, v8")
    A("v_lshl_add_u32 v6, v9, 13, v8")
    A("v_mul_u32_u24 v7, 3584, v9"); A("v_add_u32 v7, v7, v8")
    A("s_lshl_b32 s56, s30, 20"); A("s_lshl_b32 s72, s28, 10"); A("s_add_u32 s56, s56, s72")
    A("s_lshl_b32 s72, s31, 7"); A("s_add_u32 s56, s56, s72"); A("s_lshl_b32 s72, s54, 16"); A("s_add_u32 s56, s56, s72")
    A("s_add_u32 s57, s56, 0x80000")
    A("s_lshl_b32 s72, s76, 3"); A("s_add_u32 s72, s72, s54"); A(f"s_mul_i32 s58, s72, {8*3584}"); A("s_lshl_b32 s72, s75, 7"); A("s_add_u32 s58, s58, s72")
    A("s_lshl_b32 s73, s54, 10")
    A("s_cmp_lt_u32 s75, 28")
    A("s_cselect_b32 s42, 0x1c0000, 0")
    A("s_mov_b32 s38, s42"); A("s_mov_b32 s46, 0x400000"); A("s_mov_b32 s34, 0x8000000")
    for r in (35, 39, 43, 47): A(f"s_mov_b32 s{r}, 0x20000")
    A(f"s_add_u32 m0, s73, {L_WQ}")
    A("s_waitcnt lgkmcnt(0)")
    stamp(1)
    A("s_mov_b64 s[44:45], s[10:11]")
    issued = []
    def ldK(i):
        A(f"buffer_load_dwordx4 v[{KR+4*i}:{KR+4*i+3}], v4, s[32:35], s{56+i} offen {kvflags}"); issued.append(("K", i))
    def ldV(i):
        A(f"buffer_load_dwordx4 v[{VR+4*i}:{VR+4*i+3}], v5, s[36:39], s{56+i} offen {kvflags}"); issued.append(("V", i))
    def ldW(tag, va, sr, so, lds):
        if lds is not None: A(f"s_add_u32 m0, s73, {lds}")
        A(f"buffer_load_dwordx4 v{va}, s[{sr}:{sr+3}], s{so} offen {wflags} lds"); issued.append(tag)
    def waitfor(tag):
        n = len(issued) - 1 - issued.index(tag)
        A(f"s_waitcnt vmcnt({n})")
    ldW("q0", 6, 44, 56, None)
    A("s_mov_b64 s[40:41], s[16:17]"); A("s_mov_b64 s[36:37], s[18:19]"); A("s_mov_b64 s[32:33], s[6:7]")
    ldW("q1", 6, 44, 57, L_WQ + 8192)
    ldW("g", 7, 40, 58, L_GA)
    if cap > 3: ldW("u", 7, 36, 58, L_UP)
    A("s_load_dword s52, s[26:27], 0")
    A("s_barrier")
    A("s_and_b32 s72, s54, 1"); A("s_lshl_b32 s72, s72, 6")
    A("v_and_b32 v6, 1, v3"); A("v_lshlrev_b32 v6, 5, v6"); A("v_or_b32 v6, s72, v6"); A("v_xor_b32 v6, v6, v8")
    A("v_lshl_add_u32 v6, v9, 10, v6")
    if cap <= 3:
        A(f"s_waitcnt vmcnt({cap-1})")
        ldW("u", 7, 36, 58, L_UP)
    A("s_mov_b64 s[36:37], s[8:9]"); A("s_mov_b32 s38, 0x8000000")
    A("s_mov_b64 s[44:45], s[20:21]"); A("s_mov_b32 s46, s42")
    A("s_mov_b64 s[40:41], s[12:13]"); A("s_mov_b32 s42, 0x400000")
    A("v_and_b32 v7, 1, v0"); A("v_lshlrev_b32 v7, 4, v7"); A("v_mov_b32 v8, 0xffff"); A("v_lshlrev_b32 v7, v7, v8")
    A("v_cmp_gt_u32 vcc, 2, v11")
    A("v_cndmask_b32 v8, 0, v7, vcc")
    A("v_cndmask_b32 v9, v7, 0, vcc")
    A(f"s_mov_b32 s79, {hex(CSC)}")
    seq = [("K", i) for i in range(16)] + [("V", i) for i in range(nv_early)]
    told = set()
    for kind, i in seq:
        if kind == "K": koff(i)
        A(f"s_waitcnt vmcnt({cap-1})")
        done = issued[:len(issued) - (cap - 1)]
        (ldK if kind == "K" else ldV)(i)
        for tag, fl in (("q1", FL_WQ), ("u", FL_GU)):
            if tag in done and tag not in told:
                told.add(tag); ldsinc(fl, 7)
    waitfor(("K", 15))
    A("s_waitcnt lgkmcnt(0)")
    tags_from_epoch()
    stamp(2)
    ldswait(FL_Q, None, 7)
    A("v_readfirstlane_b32 s78, v7")
    A(f"ds_read_b128 v[{QF}:{QF+3}], v5 offset:{L_QF}")
    A("s_waitcnt lgkmcnt(0)")
    stamp(3)
    nv = nv_early
    for gq in range(4):
        for t in range(4):
            i = 4*gq + t
            A(f"v_mfma_f32_16x16x32_bf16 v[{DT+4*t}:{DT+4*t+3}], v[{KR+4*i}:{KR+4*i+3}], v[{QF}:{QF+3}], 0")
        if nv < nv_early + nv_mid and nv < 16 and gq in (0, 2):
            ldV(nv); nv += 1
        for c in range(4):
            for t in range(4):
                i = 4*gq + t
                z = KR + 4*i
                if c == 0: A(f"v_mov_b32_dpp v{z}, v{DT+4*t} quad_perm:[0,0,0,0] {DPP}")
                else: A(f"v_add_f32_dpp v{z}, v{DT+4*t+c}, v{z} quad_perm:[{c},{c},{c},{c}] {DPP}")
    Z = lambda i: KR + 4*i
    A(f"v_max3_f32 v16, v{Z(0)}, v{Z(1)}, v{Z(2)}"); A(f"v_max3_f32 v17, v{Z(3)}, v{Z(4)}, v{Z(5)}")
    A(f"v_max3_f32 v18, v{Z(6)}, v{Z(7)}, v{Z(8)}"); A(f"v_max3_f32 v19, v{Z(9)}, v{Z(10)}, v{Z(11)}")
    A(f"v_max3_f32 v16, v16, v{Z(12)}, v{Z(13)}"); A(f"v_max3_f32 v17, v17, v{Z(14)}, v{Z(15)}")
    A("v_max3_f32 v16, v16, v17, v18"); A("v_max_f32 v16, v16, v19")
    allred_rows("v_max_f32", 16, 18)
    A("v_mul_f32 v18, s79, v16")
    for i in range(16): A(f"v_fma_f32 v{Z(i)}, v{Z(i)}, s79, -v18")
    for i in range(16): A(f"v_exp_f32 v{Z(i)}, v{Z(i)}")
    while nv < nv_early + nv_mid and nv < 16:
        ldV(nv); nv += 1
    for k in range(4): A(f"v_add_f32 v{20+k}, v{Z(k)}, v{Z(k+4)}")
    for k in range(4): A(f"v_add_f32 v{20+k}, v{20+k}, v{Z(k+8)}")
    for k in range(4): A(f"v_add_f32 v{20+k}, v{20+k}, v{Z(k+12)}")
    A("v_add_f32 v20, v20, v21"); A("v_add_f32 v22, v22, v23"); A("v_add_f32 v17, v20, v22")
    allred_rows("v_add_f32", 17, 18)
    A("s_lshl_b32 s72, s54, 3")
    A("v_lshl_add_u32 v7, v10, 6, s72")
    A(f"ds_write_b64 v7, v[16:17] offset:{L_ST}")
    ldsinc(FL_ST, 7)
    for i in range(16): A(f"v_cvt_pk_bf16_f32 v{Z(i)+1}, v{Z(i)}, v{Z(i)}")
    for i in range(16):
        A(f"v_and_b32 v{Z(i)+2}, v{Z(i)+1}, v8"); A(f"v_and_b32 v{Z(i)+3}, v{Z(i)+1}, v9")
    stamp(4)
    O0, O1 = 16, 20
    c2 = cap2 or cap
    for i in range(16):
        if i == 15:
            ldswait(FL_F, None, 7)
            A(f"ds_read_b32 v12, v26 offset:{L_F}")
        waitfor(("V", i))
        while nv < 19 and nv - i - 1 < c2:
            if nv < 16: ldV(nv)
            elif nv == 16: ldW("d", 6, 44, 56, L_DN)
            elif nv == 17: ldW("o0", 6, 40, 57, L_WO)
            else: ldW("o1", 6, 40, 58, L_WO + 8192)
            nv += 1
        A(f"v_mfma_f32_16x16x16_bf16 v[{O0}:{O0+3}], v[{Z(i)+2}:{Z(i)+3}], v[{VR+4*i}:{VR+4*i+1}], " + ("0" if i == 0 else f"v[{O0}:{O0+3}]"))
        A(f"v_mfma_f32_16x16x16_bf16 v[{O1}:{O1+3}], v[{Z(i)+2}:{Z(i)+3}], v[{VR+4*i+2}:{VR+4*i+3}], " + ("0" if i == 0 else f"v[{O1}:{O1+3}]"))
        if i == vp_at:
            A("s_lshl_b32 s72, s54, 13")
            A("s_lshl_b32 s56, s75, 16"); A("s_add_u32 s56, s56, s72"); A("s_lshl_b32 s74, s76, 7"); A("s_add_u32 s56, s56, s74")
            A("s_lshl_b32 s57, s77, 17"); A("s_add_u32 s57, s57, s72"); A("s_lshl_b32 s74, s31, 7"); A("s_add_u32 s57, s57, s74")
            A("s_add_u32 s58, s57, 0x10000")
            A(f"s_mul_i32 s72, s54, {ORP}"); A(f"s_add_u32 s72, s72, {L_ORED}"); A("v_add_u32 v24, s72, v5")
            A(f"v_mul_u32_u24 v25, {2*ORP}, v11")
            A("v_bfe_u32 v7, v0, 2, 1"); A("v_lshl_add_u32 v25, v7, 10, v25")
            A("v_lshrrev_b32 v7, 3, v0"); A("v_lshl_add_u32 v25, v7, 4, v25")
            A("s_lshl_b32 s72, s54, 7"); A(f"s_add_u32 s72, s72, {L_ORED}"); A("v_add_u32 v25, s72, v25")
            A("s_lshl_b32 s72, s54, 4"); A("v_lshl_add_u32 v26, v3, 2, s72")
            A("s_lshl_b32 s72, s77, 3"); A("s_add_u32 s72, s72, s31"); A("s_lshl_b32 s72, s72, 11")
            A("s_lshl_b32 s74, s54, 8"); A("s_add_u32 s72, s72, s74"); A(f"s_add_u32 s72, s72, {WS_OBOX}")
            A("v_lshrrev_b32 v7, 2, v0"); A("v_lshl_add_u32 v27, v7, 4, s72")
            A("v_mov_b32 v28, 1")
    A("s_waitcnt lgkmcnt(0)")
    stamp(5)
    for k in range(4): A(f"v_pk_mul_f32 v[{16+2*k}:{17+2*k}], v[{16+2*k}:{17+2*k}], v[12:13] op_sel_hi:[1,0]")
    A("ds_write_b128 v24, v[16:19]")
    A("ds_write_b128 v24, v[20:23] offset:1024")
    A("s_mov_b64 exec, 1")
    A(f"ds_add_u32 v1, v28 offset:{FL_O}")
    A("s_mov_b64 exec, -1")
    A("s_branch L_or")
    A.label("L_orr")
    A("s_waitcnt lgkmcnt(0)")
    if orsleep: A(f"s_sleep {orsleep}")
    A("s_add_u32 s53, s53, 1")
    A(f"s_cmp_gt_u32 s53, {spin}")
    A("s_cbranch_scc1 L_end")
    A.label("L_or")
    A(f"ds_read_b32 v7, v1 offset:{FL_O}")
    A("ds_read_b128 v[32:35], v25")
    A(f"ds_read_b128 v[36:39], v25 offset:{ORP}")
    A("s_waitcnt lgkmcnt(2)")
    A("v_cmp_ne_u32 vcc, 8, v7")
    A("s_cbranch_vccnz L_orr")
    A("s_waitcnt lgkmcnt(0)")
    for k in range(2): A(f"v_pk_add_f32 v[{32+2*k}:{33+2*k}], v[{32+2*k}:{33+2*k}], v[{36+2*k}:{37+2*k}]")
    for qp in ("[1,0,3,2]", "[2,3,0,1]"):
        for k in range(4): A(f"v_add_f32_dpp v{32+k}, v{32+k}, v{32+k} quad_perm:{qp} {DPP}")
    A("s_mov_b32 exec_lo, 0x11111111"); A("s_mov_b32 exec_hi, 0x11111111")
    for k in range(4): A(f"v_and_or_b32 v{32+k}, v{32+k}, v2, {TAU[k]}")
    publish([(27, 32, 0)])
    A("s_mov_b64 exec, 1")
    A(f"ds_add_u32 v1, v28 offset:{FL_OP}")
    stamp(6)
    A("s_waitcnt vmcnt(1)")
    A(f"ds_add_u32 v1, v28 offset:{FL_WO}")
    stamp(9)
    A("s_mov_b64 exec, -1")
    if dbg & 8: A("s_branch L_kvdone")
    A("s_cmp_lg_u32 s54, 0")
    A("s_cbranch_scc1 L_kvdone")
    A("s_cmp_lt_u32 s2, 64")
    A("s_cbranch_scc0 L_kvdone")
    A("s_lshl_b32 s72, s2, 12"); A(f"s_add_u32 s72, s72, {WS_SIN}"); A("v_lshl_add_u32 v4, v0, 4, s72")
    A(f"v_add_u32 v5, {WS_FIN - WS_SIN}, v4")
    A("v_bfe_u32 v26, v0, 1, 2"); A("v_lshlrev_b32 v26, 10, v26")
    A("v_and_b32 v7, 1, v0"); A("v_lshl_add_u32 v26, v7, 3, v26"); A("v_lshl_add_u32 v26, v3, 1, v26")
    A("s_lshl_b32 s72, s2, 4"); A("v_add_u32 v26, s72, v26")
    for k in range(4): A(f"v_mov_b32 v{60+k}, {TAU[k]}")
    A("global_load_ushort v65, v26, s[4:5]")
    ldswait(FL_SP, 4, 7, 1)
    if sdelay: A(f"s_sleep {sdelay}")
    stamp(7)
    poll([(60, 5, 3072), (48, 5, 0), (52, 5, 1024), (56, 5, 2048), (32, 4, 0), (36, 4, 1024), (40, 4, 2048), (44, 4, 3072)], 6, 7, psleep, first_mask=0)
    stamp(8)
    reduce_f([48, 32])
    A("v_cvt_pk_bf16_f32 v48, 0, v48")
    A("v_cvt_pk_bf16_f32 v32, 0, v32")
    A("v_lshlrev_b32 v65, 16, v65")
    silu(64, 48, 1)
    A("v_mul_f32 v32, v32, v64")
    A("v_cvt_pk_bf16_f32 v32, 0, v32")
    A("v_add_f32 v32, v32, v65")
    A("v_cvt_pk_bf16_f32 v32, v32, v32")
    A("s_mov_b32 exec_lo, 0x00ff00ff"); A("s_mov_b32 exec_hi, 0x00ff00ff")
    A("global_store_short v26, v32, s[22:23]")
    A("s_cmp_lg_u32 s2, 0")
    A("s_cbranch_scc1 L_kvdone")
    A("s_mov_b64 exec, 1")
    A("v_mov_b32 v5, 0"); A("v_mov_b32 v6, s52")
    A("global_store_dword v5, v6, s[26:27]")
    if padto:
        A.label("L_pad")
        A("s_memrealtime s[98:99]"); A("s_waitcnt lgkmcnt(0)"); A("s_sub_u32 s98, s98, s96")
        A(f"s_cmp_lt_u32 s98, {padto}"); A("s_cbranch_scc1 L_pad")
    A.label("L_kvdone")
    if stamps:
        A("s_waitcnt vmcnt(0)")
        stamp(10)
    dump_stamps()
    A("s_endpgm")

    A.raw(".p2align 6")
    A.label("L_help"); A.reset()
    A("s_setprio 3")
    A("v_and_b32 v4, 15, v0")
    A("s_mov_b32 s55, s76"); A("s_mov_b32 s54, s75")
    A("v_lshrrev_b32 v9, 3, v0"); A("v_and_b32 v8, 7, v0"); A("v_lshlrev_b32 v8, 4, v8")
    A("v_lshl_add_u32 v15, v3, 3, v10"); A("v_lshlrev_b32 v15, 7, v15"); A("v_lshl_add_u32 v15, v11, 3, v15")
    A("s_getreg_b32 s66, hwreg(HW_REG_XCC_ID)")
    A("s_and_b32 s66, s66, 15"); A("s_add_u32 s66, s66, 1"); A("s_mul_i32 s66, s66, 0x01010101")
    A("s_lshl_b32 s62, s28, 5"); A("s_add_u32 s72, s62, s29")
    A("v_mov_b32 v12, s72"); A("v_mov_b32 v14, s66"); A("v_lshl_add_u32 v13, v0, 2, s62")
    A("s_cmp_gt_u32 s3, 1")
    A("s_cbranch_scc1 L_h23")
    A("v_lshlrev_b32 v5, 4, v4"); A("v_lshl_add_u32 v5, v3, 10, v5")
    for t in range(4):
        A(f"s_add_u32 s72, s30, {t}"); A("s_and_b32 s72, s72, 3"); A("s_lshl_b32 s72, s72, 8")
        A(f"v_add_u32 v{32+t}, s72, v5")
    A("s_waitcnt lgkmcnt(0)")
    stamp(1)
    XR = 16
    A("s_cmp_eq_u32 s3, 0")
    A("s_cbranch_scc0 L_nox")
    A("s_mov_b64 exec, 1")
    A("global_store_byte v12, v14, s[24:25]")
    A("s_mov_b64 exec, -1")
    A.label("L_nox")
    for t in range(4):
        A(f"global_load_dwordx4 v[{XR+4*t}:{XR+4*t+3}], v{32+t}, s[4:5]")
    A("s_load_dword s52, s[26:27], 0")
    A("s_barrier")
    FX = 32
    A("s_waitcnt vmcnt(0)")
    stamp(2)
    for k in range(16):
        A(f"v_lshlrev_b32 v{FX+2*k}, 16, v{XR+k}")
        A(f"v_and_b32 v{FX+2*k+1}, 0xffff0000, v{XR+k}")
    S = 64
    for k in range(8): A(f"v_pk_add_f32 v[{S+2*k}:{S+2*k+1}], v[{FX+4*k}:{FX+4*k+1}], v[{FX+4*k+2}:{FX+4*k+3}]")
    for n in (4, 2, 1):
        for k in range(n): A(f"v_pk_add_f32 v[{S+2*k}:{S+2*k+1}], v[{S+2*k}:{S+2*k+1}], v[{S+2*(k+n)}:{S+2*(k+n)+1}]")
    A(f"v_add_f32 v12, v{S}, v{S+1}")
    for r in (8, 4, 2, 1): A(f"v_add_f32_dpp v12, v12, v12 row_ror:{r} {DPP}")
    A(f"v_mul_f32 v12, {hex(f2u(1/512))}, v12")
    for k in range(16):
        A(f"v_pk_add_f32 v[{S+2*k}:{S+2*k+1}], v[{FX+2*k}:{FX+2*k+1}], v[12:13] op_sel_hi:[1,0] neg_lo:[0,1] neg_hi:[0,1]")
    for k in range(4): A(f"v_pk_mul_f32 v[{96+2*k}:{96+2*k+1}], v[{S+2*k}:{S+2*k+1}], v[{S+2*k}:{S+2*k+1}]")
    for k in range(4, 16):
        q = k & 3
        A(f"v_pk_fma_f32 v[{96+2*q}:{96+2*q+1}], v[{S+2*k}:{S+2*k+1}], v[{S+2*k}:{S+2*k+1}], v[{96+2*q}:{96+2*q+1}]")
    A("v_pk_add_f32 v[96:97], v[96:97], v[98:99]"); A("v_pk_add_f32 v[100:101], v[100:101], v[102:103]")
    A("v_pk_add_f32 v[96:97], v[96:97], v[100:101]")
    A("v_add_f32 v14, v96, v97")
    for r in (8, 4, 2, 1): A(f"v_add_f32_dpp v14, v14, v14 row_ror:{r} {DPP}")
    A(f"v_mul_f32 v14, {hex(f2u(1/512))}, v14")
    A("v_cvt_pk_bf16_f32 v12, 0, v12")
    A("v_cvt_pk_bf16_f32 v14, 0, v14")
    A(f"v_add_f32 v14, {hex(f2u(1e-5))}, v14")
    A("v_cvt_pk_bf16_f32 v14, 0, v14")
    A("v_sqrt_f32 v14, v14")
    A("v_cvt_pk_bf16_f32 v14, 0, v14")
    A("v_rcp_f32 v14, v14")
    for k in range(4):
        A(f"v_pk_add_f32 v[{S+2*k}:{S+2*k+1}], v[{FX+2*k}:{FX+2*k+1}], v[12:13] op_sel_hi:[1,0] neg_lo:[0,1] neg_hi:[0,1]")
    for k in range(4): A(f"v_cvt_pk_bf16_f32 v{XR+k}, v{S+2*k}, v{S+2*k+1}")
    for k in range(4):
        A(f"v_lshlrev_b32 v{S+2*k}, 16, v{XR+k}")
        A(f"v_and_b32 v{S+2*k+1}, 0xffff0000, v{XR+k}")
    for k in range(4): A(f"v_pk_mul_f32 v[{S+2*k}:{S+2*k+1}], v[{S+2*k}:{S+2*k+1}], v[14:15] op_sel_hi:[1,0]")
    for k in range(4): A(f"v_cvt_pk_bf16_f32 v{XR+k}, v{S+2*k}, v{S+2*k+1}")
    A("s_mul_i32 s72, s3, 0x500")
    A(f"v_mul_u32_u24 v5, {XNP}, v3"); A("v_lshl_add_u32 v5, v4, 4, v5"); A("v_add_u32 v5, s72, v5")
    A(f"ds_write_b128 v5, v[{XR}:{XR+3}] offset:{L_XN}")
    A(f"v_mul_u32_u24 v5, {XNP}, v11"); A("v_lshl_add_u32 v5, v3, 4, v5")
    XF = 32
    WF = 96
    A("s_waitcnt lgkmcnt(0)")
    tags_from_epoch()
    A("s_cmp_eq_u32 s3, 0")
    A("s_cbranch_scc0 L_hf")

    for s in range(4): A(f"ds_read_b128 v[{XF+4*s}:{XF+4*s+3}], v5 offset:{L_XN + 64*s}")
    A("s_lshl_b32 s72, s28, 15"); A("s_lshl_b32 s73, s30, 11"); A("s_add_u32 s72, s72, s73")
    A("s_lshl_b32 s73, s31, 8"); A("s_add_u32 s72, s72, s73"); A(f"s_add_u32 s72, s72, {WS_QBOX}")
    A("v_lshlrev_b32 v5, 13, v11"); A("v_lshl_add_u32 v5, v3, 4, v5"); A("v_add_u32 v5, s72, v5")
    ldswait(FL_WQ, 8, 7)
    if dbg & 1:
        A("v_mov_b32 v16, 1"); A(f"ds_write_b32 v1, v16 offset:{FL_Q}"); A(f"ds_write_b32 v1, v16 offset:{FL_F}"); A("s_branch L_done")
    stamp(3)
    tile_reads(L_WQ, 4, WF)
    A("s_waitcnt lgkmcnt(0)")
    tile_mfma(64, 4, WF, XF)
    A("s_lshl_b32 s72, s77, 13"); A(f"s_add_u32 s72, s72, {WS_QBOX + 4096}")
    A("v_lshlrev_b32 v8, 9, v10")
    A("v_lshl_add_u32 v8, v3, 7, v8"); A("v_lshl_add_u32 v8, v11, 5, v8"); A("v_add_u32 v8, s72, v8")
    getmode(7)
    for k in range(16): A(f"v_and_or_b32 v{64+k}, v{64+k}, v2, {TAU[k&3]}")
    ex16()
    publish([(5, 64+4*nt, nt*64) for nt in range(4)])
    A("s_mov_b64 exec, -1")
    stamp(4)
    if qdelay: A(f"s_sleep {qdelay}")
    poll([(32 + 8*kq + 4*hf, 8, kq*2048 - 4096 + 16*hf) for kq in range(4) for hf in range(2)], 6, 7, hsleep)
    for k in range(4): A(f"v_pk_add_f32 v[{32+2*k}:{33+2*k}], v[{32+2*k}:{33+2*k}], v[{40+2*k}:{41+2*k}]")
    for k in range(4): A(f"v_pk_add_f32 v[{48+2*k}:{49+2*k}], v[{48+2*k}:{49+2*k}], v[{56+2*k}:{57+2*k}]")
    for k in range(4): A(f"v_pk_add_f32 v[{32+2*k}:{33+2*k}], v[{32+2*k}:{33+2*k}], v[{48+2*k}:{49+2*k}]")
    for k in range(4): A(f"v_cvt_pk_bf16_f32 v{40+k}, v{32+2*k}, v{33+2*k}")
    A("v_lshlrev_b32 v5, 4, v0")
    A(f"ds_write_b128 v5, v[40:43] offset:{L_QF}")
    A("v_mov_b32 v16, s78")
    A(f"ds_write_b32 v1, v16 offset:{FL_Q}")
    stamp(5)
    A("v_and_b32 v5, 31, v0"); A("v_lshlrev_b32 v6, 3, v5")
    A("s_lshl_b32 s72, s77, 9"); A(f"s_add_u32 s72, s72, {WS_SBOX}")
    A("v_lshl_add_u32 v8, v5, 4, s72")
    A("s_lshl_b32 s73, s31, 4"); A("s_add_u32 s73, s73, s72")
    A("v_lshrrev_b32 v9, 3, v5"); A("v_lshl_add_u32 v12, v9, 7, s73")
    A("v_and_b32 v5, 7, v0"); A("v_lshlrev_b32 v5, 4, v5"); A("v_lshl_add_u32 v5, v9, 2, v5")
    A(f"s_mov_b32 s64, {hex(CSC)}")
    if dbg & 4:
        A("v_mov_b32 v16, 1"); A(f"ds_write_b32 v1, v16 offset:{FL_F}"); A("s_branch L_done")
    ldswait(FL_ST, 8, 19)
    A(f"ds_read_b64 v[16:17], v6 offset:{L_ST}")
    A("s_waitcnt lgkmcnt(0)")
    A("v_mov_b32 v20, v16")
    allred8("v_max_f32", 20)
    A(f"v_and_or_b32 v20, v20, v2, {T0}")
    A("v_sub_f32 v21, v16, v20"); A("v_mul_f32 v21, s64, v21"); A("v_exp_f32 v21, v21"); A("v_mul_f32 v21, v21, v17")
    allred8("v_add_f32", 21)
    A(f"v_and_or_b32 v21, v21, v2, {T1}")
    A(f"v_mov_b32 v22, {T2}"); A(f"v_mov_b32 v23, {T3}")
    A("s_mov_b32 exec_lo, 0x01010101"); A("s_mov_b32 exec_hi, 0")
    publish([(12, 20, 0)])
    A("s_mov_b32 exec_lo, -1")
    stamp(6)
    if stdelay: A(f"s_sleep {stdelay}")
    poll([(24, 8, 0)], 6, 7, hsleep)
    A("v_mov_b32 v20, v24")
    allred8("v_max_f32", 20)
    A("v_sub_f32 v21, v24, v20"); A("v_mul_f32 v21, s64, v21"); A("v_exp_f32 v21, v21"); A("v_mul_f32 v21, v21, v25")
    allred8("v_add_f32", 21)
    A("v_sub_f32 v22, v16, v20"); A("v_mul_f32 v22, s64, v22"); A("v_exp_f32 v22, v22")
    A("v_rcp_f32 v21, v21")
    A("v_mul_f32 v22, v22, v21")
    A("s_mov_b32 exec_hi, 0")
    A(f"ds_write_b32 v5, v22 offset:{L_F}")
    ldsinc(FL_F, 7)
    A("s_branch L_tail")

    A.label("L_hf"); A.reset()
    A("s_mov_b32 s63, 0x07060302")
    A("s_cmp_lt_u32 s54, 28")
    A("s_cbranch_scc0 L_tail")
    A("s_and_b32 s72, s55, 1"); A("s_lshl_b32 s72, s72, 7"); A("v_add_u32 v5, s72, v5")
    for s in range(2): A(f"ds_read_b128 v[{XF+4*s}:{XF+4*s+3}], v5 offset:{L_XN + 0x500 + 64*s}")
    A("s_lshl_b32 s72, s54, 14"); A("s_lshl_b32 s73, s55, 8"); A("s_add_u32 s72, s72, s73"); A(f"s_add_u32 s72, s72, {WS_GBOX + 4096}")
    A("v_lshrrev_b32 v6, 1, v3"); A("v_lshlrev_b32 v6, 11, v6"); A("v_lshl_add_u32 v6, v11, 5, v6")
    A("v_and_b32 v7, 1, v3"); A("v_lshl_add_u32 v6, v7, 4, v6"); A("v_add_u32 v6, s72, v6")
    A("v_add_u32 v7, 0x2000, v6")
    ldswait(FL_GU, 8, 12)
    if dbg & 2: A("s_branch L_done")
    stamp(3)
    tile_reads(L_GA, 2, WF); tile_reads(L_UP, 2, WF + 32)
    A("s_waitcnt lgkmcnt(0)")
    tile_mfma(64, 2, WF, XF); tile_mfma(80, 2, WF + 32, XF)
    getmode(12)
    for k in range(32): A(f"v_and_or_b32 v{64+k}, v{64+k}, v2, {TAU[k&3]}")
    ex16()
    publish([(6 + (nt >> 1), 64+16*mat+4*nt, (nt & 1) * 4096 - 4096 + mat*128) for mat in range(2) for nt in range(4)])
    A("s_mov_b64 exec, -1")
    stamp(4)
    A("s_lshl_b32 s72, s54, 3"); A("s_add_u32 s65, s72, s55")
    A("s_lshl_b32 s72, s65, 11"); A(f"s_add_u32 s72, s72, {WS_GBOX}")
    A("v_lshlrev_b32 v5, 8, v9"); A("v_and_b32 v8, 7, v0"); A("v_lshl_add_u32 v5, v8, 4, v5"); A("v_add_u32 v5, s72, v5")
    A("s_lshl_b32 s72, s65, 5"); A(f"s_add_u32 s72, s72, {WS_HBOX}")
    A("v_bfe_u32 v8, v0, 1, 2"); A("v_mul_u32_u24 v8, 7168, v8"); A("v_and_b32 v12, 1, v0"); A("v_lshl_add_u32 v8, v12, 4, v8"); A("v_add_u32 v8, s72, v8")
    if fdelay: A(f"s_sleep {fdelay}")
    poll([(20, 5, 0), (24, 5, 128)], 6, 7, hsleep)
    for r in range(4): A(f"v_permlane32_swap_b32 v{20+r}, v{24+r}")
    for r in range(4): A(f"v_add_f32 v{20+r}, v{20+r}, v{24+r}")
    for r in range(4): A(f"v_mov_b32 v{24+r}, v{20+r}")
    for r in range(4): A(f"v_permlane16_swap_b32 v{20+r}, v{24+r}")
    for r in range(4): A(f"v_add_f32 v{20+r}, v{20+r}, v{24+r}")
    for r in range(4): A(f"v_add_f32_dpp v{20+r}, v{20+r}, v{20+r} row_ror:8 {DPP}")
    for r in range(4): A(f"v_cvt_pk_bf16_f32 v{20+r}, 0, v{20+r}")
    for r in range(4): A(f"v_permlane32_swap_b32 v{20+r}, v{24+r}")
    silu(28, 20, 4)
    for r in range(4): A(f"v_mul_f32 v{28+r}, v{28+r}, v{24+r}")
    for r in range(4): A(f"v_cvt_pk_bf16_f32 v{28+r}, 0, v{28+r}")
    for r in range(4): A(f"v_or_b32 v{28+r}, {TAU[r]}, v{28+r}")
    A("s_mov_b64 exec, 0xff")
    publish([(8, 28, 0)])
    A("s_mov_b64 exec, -1")
    stamp(5)
    A("s_lshl_b32 s72, s54, 8"); A(f"s_add_u32 s72, s72, {WS_HBOX}")
    A("v_mul_u32_u24 v5, 7168, v11"); A("v_lshl_add_u32 v5, v3, 5, v5"); A("v_add_u32 v5, s72, v5")
    ex16()
    if fdelay: A(f"s_sleep {fdelay}")
    poll([(32, 5, 0), (36, 5, 16), (40, 5, 128), (44, 5, 144)], 6, 7, hsleep)
    for k in range(8): A(f"v_perm_b32 v{48+k}, v{33+2*k}, v{32+2*k}, s63")
    A("v_lshlrev_b32 v5, 4, v0")
    A(f"ds_write_b128 v5, v[48:51] offset:{L_HB}"); A(f"ds_write_b128 v5, v[52:55] offset:{L_HB + 1024}")
    ldsinc(FL_H, 7)
    stamp(6)
    A("s_branch L_tail")

    A.label("L_h23"); A.reset()
    A("v_mov_b32 v16, 0"); A("v_mov_b32 v17, 0"); A("v_mov_b32 v18, 0"); A("v_mov_b32 v19, 0")
    A("ds_write_b128 v1, v[16:19]"); A("ds_write_b128 v1, v[16:19] offset:16"); A("ds_write_b128 v1, v[16:19] offset:32")
    A("s_waitcnt lgkmcnt(0)")
    stamp(1)
    A("s_load_dword s52, s[26:27], 0")
    A("s_cmp_eq_u32 s3, 2")
    A("s_cbranch_scc1 L_h2")
    A("s_barrier")
    A("s_waitcnt lgkmcnt(0)")
    tags_from_epoch()
    A("s_branch L_tail")
    A.label("L_h2")
    A("s_mov_b64 exec, 0xff")
    A("s_barrier")
    A("s_mov_b32 s78, 2")
    A("s_mov_b32 s67, 0")
    A("s_waitcnt lgkmcnt(0)")
    tags_from_epoch()
    A.label("L_xr")
    A("s_add_u32 s67, s67, 1")
    A(f"s_cmp_gt_u32 s67, {xtries}")
    A("s_cbranch_scc1 L_xe")
    if xpoll == "s":
        A("s_load_dwordx8 s[32:39], s[24:25], s62 glc")
        A("s_mov_b32 s69, s66"); A("s_mov_b32 s68, s66")
        A("s_waitcnt lgkmcnt(0)")
        for k in range(4): A(f"s_xor_b64 s[{32+2*k}:{33+2*k}], s[{32+2*k}:{33+2*k}], s[68:69]")
        A("s_or_b64 s[32:33], s[32:33], s[34:35]"); A("s_or_b64 s[36:37], s[36:37], s[38:39]"); A("s_or_b64 s[32:33], s[32:33], s[36:37]")
        A("s_cbranch_scc1 L_xr")
    else:
        A(f"global_load_dword v14, v13, s[24:25] {pflags}")
        A("s_waitcnt vmcnt(0)")
        A("v_cmp_ne_u32 vcc, s66, v14")
        A("s_cbranch_vccnz L_xr")
    if not force_slow: A("s_mov_b32 s78, 1")
    A.label("L_xe")
    A("s_mov_b64 exec, -1")
    A("v_mov_b32 v16, s78")
    A(f"ds_write_b32 v1, v16 offset:{FL_MODE}")
    stamp(2)

    A.raw(".p2align 6")
    A.label("L_tail"); A.reset()
    stamp(7)
    if dbg & 8:
        A("s_cmp_lg_u32 s2, 0"); A("s_cbranch_scc1 L_done"); A("s_cmp_lg_u32 s3, 3"); A("s_cbranch_scc1 L_done")
        ldswait(FL_WO, 8, 12, 8)
        A("s_mov_b64 exec, 1"); A("v_mov_b32 v5, 0"); A("v_mov_b32 v6, s52"); A("global_store_dword v5, v6, s[26:27]"); A("s_branch L_done")
    A("v_lshrrev_b32 v9, 3, v0"); A("v_and_b32 v8, 7, v0")
    A("s_lshl_b32 s72, s28, 2"); A("s_add_u32 s72, s72, s3"); A("s_lshl_b32 s72, s72, 14"); A("s_lshl_b32 s73, s30, 9"); A("s_add_u32 s72, s72, s73")
    A(f"s_add_u32 s72, s72, {WS_OBOX}")
    A("v_lshlrev_b32 v28, 11, v9"); A("v_lshl_add_u32 v28, v8, 4, v28"); A("v_add_u32 v28, s72, v28")
    A(f"s_mul_i32 s72, s3, {OBP}")
    A("v_lshlrev_b32 v29, 3, v8"); A("v_lshl_add_u32 v29, v3, 6, v29"); A("v_add_u32 v29, s72, v29")
    A(f"v_mul_u32_u24 v30, {OBP}, v11"); A("v_lshl_add_u32 v30, v3, 4, v30")
    A("v_and_b32 v7, 1, v3"); A("v_bfe_u32 v31, v0, 3, 1"); A("v_lshl_or_b32 v31, v7, 1, v31"); A("v_xor_b32 v31, s3, v31")
    A("v_lshl_add_u32 v31, v31, 5, v15")
    A("s_lshl_b32 s72, s31, 3"); A("s_lshl_b32 s73, s3, 1"); A("s_add_u32 s72, s72, s73"); A("s_lshl_b32 s72, s72, 12")
    A("s_lshl_b32 s73, s77, 7"); A("s_add_u32 s72, s72, s73"); A(f"s_add_u32 s72, s72, {WS_SIN}")
    A("v_lshlrev_b32 v27, 5, v11"); A("v_lshl_add_u32 v27, v7, 4, v27"); A("v_lshrrev_b32 v7, 1, v3"); A("v_lshl_add_u32 v27, v7, 12, v27")
    A("v_add_u32 v27, s72, v27")
    A("s_sub_u32 s72, s76, s31"); A("s_lshl_b32 s72, s72, 15"); A("s_sub_u32 s73, s75, s77"); A("s_lshl_b32 s73, s73, 7"); A("s_add_u32 s72, s72, s73")
    A(f"s_add_u32 s72, s72, {WS_FIN - WS_SIN}"); A("v_add_u32 v26, s72, v27")
    A("v_mov_b32 v25, 1")
    A("v_lshlrev_b32 v5, 4, v0")
    A("s_cmp_lt_u32 s75, 28")
    A("s_cbranch_scc0 L_noh")
    ldswait(FL_H, 1, 12, 4)
    A(f"ds_read_b128 v[88:91], v5 offset:{L_HB}"); A(f"ds_read_b128 v[92:95], v5 offset:{L_HB + 1024}")
    A.label("L_noh")
    if ppre:
        ldswait(FL_F, None, 12, 4)
        ex16()
        A("global_load_dword v24, v27, s[26:27] sc1"); A("global_load_dword v23, v26, s[26:27] sc1")
        A("s_mov_b64 exec, -1")
    ldswait(FL_O, None, 12, 2)
    if not early: ldswait(FL_OP, 8, 12, 0)
    def ogate():
        n = nid()
        A("s_cmp_eq_u32 s70, 1"); A(f"s_cbranch_scc1 L_og{n}")
        ldswait(FL_OP, 8, 12, 0)
        A("s_mov_b32 s70, 1")
        A.label(f"L_og{n}")
    A("s_mov_b32 s70, 0")
    poll([(32 + 4*t, 28, 128*t) for t in range(4)], 6, 7, osleep, ogate if gate else None)
    stamp(8)
    for k in range(8): A(f"v_permlane32_swap_b32 v{32+k}, v{40+k}")
    for k in range(4): A(f"v_pk_add_f32 v[{32+2*k}:{33+2*k}], v[{32+2*k}:{33+2*k}], v[{40+2*k}:{41+2*k}]")
    for k in range(4): A(f"v_permlane16_swap_b32 v{32+k}, v{36+k}")
    for k in range(2): A(f"v_pk_add_f32 v[{32+2*k}:{33+2*k}], v[{32+2*k}:{33+2*k}], v[{36+2*k}:{37+2*k}]")
    for k in range(4): A(f"v_add_f32_dpp v{32+k}, v{32+k}, v{32+k} row_ror:8 {DPP}")
    A("v_cvt_pk_bf16_f32 v32, v32, v33"); A("v_cvt_pk_bf16_f32 v33, v34, v35")
    A(f"ds_write_b64 v29, v[32:33] offset:{L_OB}")
    A("s_mov_b64 exec, 1")
    A(f"ds_add_u32 v1, v25 offset:{FL_OB}")
    A("s_mov_b64 exec, -1")
    A("s_branch L_wo")
    A.label("L_wor")
    A("s_waitcnt lgkmcnt(0)")
    A("s_add_u32 s53, s53, 1")
    A(f"s_cmp_gt_u32 s53, {spin}")
    A("s_cbranch_scc1 L_end")
    A.label("L_wo")
    A(f"ds_read_b32 v7, v1 offset:{FL_WO}")
    for s in range(2):
        for t2 in range(2):
            A(f"ds_read_b64_tr_b16 v[{80+4*s+2*t2}:{81+4*s+2*t2}], v31 offset:{L_DN + s*4096 + t2*512}")
    for s in range(4):
        for t2 in range(2):
            A(f"ds_read_b64_tr_b16 v[{64+4*s+2*t2}:{65+4*s+2*t2}], v31 offset:{L_WO + s*4096 + t2*512}")
    A("s_waitcnt lgkmcnt(12)")
    A("v_cmp_ne_u32 vcc, 8, v7")
    A("s_cbranch_vccnz L_wor")
    A("s_waitcnt lgkmcnt(8)")
    for s in range(2):
        A(f"v_mfma_f32_16x16x32_bf16 v[40:43], v[{80+4*s}:{83+4*s}], v[{88+4*s}:{91+4*s}], " + ("0" if s == 0 else "v[40:43]"))
    A("s_branch L_ob")
    A.label("L_obr")
    A("s_waitcnt lgkmcnt(0)")
    A("s_add_u32 s53, s53, 1")
    A(f"s_cmp_gt_u32 s53, {spin}")
    A("s_cbranch_scc1 L_end")
    A.label("L_ob")
    A(f"ds_read_b32 v7, v1 offset:{FL_OB}")
    for s in range(4): A(f"ds_read_b128 v[{48+4*s}:{51+4*s}], v30 offset:{L_OB + 64*s}")
    A("s_waitcnt lgkmcnt(4)")
    A("v_cmp_ne_u32 vcc, 4, v7")
    A("s_cbranch_vccnz L_obr")
    for s in range(4):
        A(f"s_waitcnt lgkmcnt({3-s})")
        A(f"v_mfma_f32_16x16x32_bf16 v[44:47], v[{64+4*s}:{67+4*s}], v[{48+4*s}:{51+4*s}], " + ("0" if s == 0 else "v[44:47]"))
    ex16()
    for k in range(4): A(f"v_and_or_b32 v{40+k}, v{40+k}, v2, {TAU[k]}")
    A("s_cmp_lt_u32 s75, 28")
    A("s_cbranch_scc0 L_nof")
    A("global_store_dwordx4 v26, v[40:43], s[26:27] sc1")
    A.label("L_nof")
    for k in range(4): A(f"v_and_or_b32 v{44+k}, v{44+k}, v2, {TAU[k]}")
    A("global_store_dwordx4 v27, v[44:47], s[26:27] sc1")
    A("s_mov_b64 exec, 1")
    A(f"ds_add_u32 v1, v25 offset:{FL_SP}")
    stamp(9)
    A.label("L_done")
    if stamps:
        A("s_waitcnt vmcnt(0)")
        stamp(10)
        dump_stamps()
    A.label("L_end")
    A("s_endpgm")
    for n, stores in slow:
        A.label(f"L_ps{n}"); A.reset()
        for va, d, off in stores: A(f"global_store_dwordx4 v{va}, v[{d}:{d+3}], s[26:27] offset:{off} sc1")
        A("s_nop 1")
        A(f"s_branch L_pd{n}")
    A.raw('.section .rodata,"a"'); A.raw(".p2align 6"); A.raw(f".amdhsa_kernel {NAME}_kernel")
    A.raw("  .amdhsa_next_free_vgpr 160"); A.raw("  .amdhsa_next_free_sgpr 102"); A.raw("  .amdhsa_accum_offset 160")
    A.raw("  .amdhsa_group_segment_fixed_size 0"); A.raw("  .amdhsa_kernarg_size 96"); A.raw("  .amdhsa_user_sgpr_count 2")
    A.raw("  .amdhsa_user_sgpr_kernarg_segment_ptr 1"); A.raw("  .amdhsa_system_sgpr_workgroup_id_x 1"); A.raw(".end_amdhsa_kernel")
    return A.text()

if __name__ == "__main__":
    out = sys.argv[1] if len(sys.argv) > 1 else f"cdna_kernels/{NAME}.s"
    kw = {}
    for a in sys.argv[2:]:
        k, v = a.split("=")
        try: v = int(v, 0)
        except ValueError: pass
        kw[k] = v
    open(out, "w").write(gen(**kw))
```

```python
import sys, struct, math
sys.path.insert(0, "work")
from asmlib import Asm

NAME = "recurrent_scan__sliding_block_cached__swiglu_ffn__decode"

def f2u(x): return struct.unpack("<I", struct.pack("<f", x))[0]

WS_E    = 0x0
WS_HINT = 0x1000
WS_SBOX = 0x4000
WS_HBOX = 0x8000
WS_OBOX = 0x80000
WS_QBOX = 0x100000
WS_SIN  = 0x140000
WS_STAMP = 0x400000
L_XN, XNP = 0x0, 320
L_FLAG = 0xA00
FL_Q, FL_ST, FL_MODE, FL_F, FL_H, FL_WO, FL_O, FL_OB, FL_WQ, FL_GU, FL_SP, FL_OP, FL_FP, FL_PD = 0, 4, 8, 12, 16, 20, 24, 28, 32, 36, 40, 44, 48, 52
L_ST = 0xB00
L_F  = 0xC00
L_QF = 0xD00
L_OB, OBP = 0x1100, 320
L_GX = 0x1600
L_HB = 0x1800
L_WQ = 0x2000
L_GA = 0x6000
L_UP = 0x8000
L_DN = 0xA000
L_WO = 0xC000
L_ORED, ORP = 0x10000, 2080
L_TOTAL = 0x14400
NH = 4
NW = 12

DPP = "row_mask:0xf bank_mask:0xf"

def gen(stamps=False, cap=3, wflags="nt", kvflags="nt", nv_early=3, nv_mid=1, spin=1 << 20,
        psleep=0, hsleep=4, osleep=1, cap2=None, pflags='sc1', xtries=24, qdelay=48, s_at=15, palign=None, xdelay=0, f_at='d', fdelay=56, stdelay=8, early=False, cap0=None, alt=0, force_slow=False,
        padto=0, xpoll='v', vp_at=10, fin_at="o", touch=False, orsleep=0, gate=True, sdelay=4, ppre='sf', pst='', pat=7, dbg=0, owarm=False, fsleep=1, hint=True, hdelay=0, hidx=31, hwarm=True, hmode='lds', hown=True, wb=0, wbmid=0):
    A = Asm()
    A.raw(f"; @launch grid=(256,1,1) block=({64*NW},1,1) lds={L_TOTAL}")
    A.raw('.amdgcn_target "amdgcn-amd-amdhsa--gfx950"')
    A.raw(".text"); A.raw(f".globl {NAME}_kernel")
    if palign is not None:
        A.raw(".p2align 12")
        pad = (palign - 0x300) % 4096
        if pad: A.raw(f".fill {pad // 4}, 4, 0xbf800000")
    A.raw(".p2align 8"); A.raw(f".type {NAME}_kernel,@function")
    A.label(f"{NAME}_kernel")
    def stamp(k):
        if stamps == 1 or (stamps >= 2 and k in (0, 9, 10)):
            assert k < 11
            A(f"s_memrealtime s[{80+2*k}:{81+2*k}]")
    def dump_stamps():
        if not stamps: return
        if stamps == 2:
            A(f"s_cmp_lg_u32 s3, {NH}"); A("s_cbranch_scc1 L_end")
        A("s_sleep 120")
        A("s_waitcnt lgkmcnt(0)")
        A("s_mov_b64 exec, 1")
        A(f"s_mul_i32 s72, s2, {NW}"); A("s_add_u32 s72, s72, s3"); A("s_lshl_b32 s72, s72, 6"); A(f"s_add_u32 s72, s72, {WS_STAMP}")
        A("v_mov_b32 v7, s72")
        for k in (range(11) if stamps == 1 else (0, 9, 10)):
            A(f"v_mov_b32 v6, s{80+2*k}")
            A(f"global_store_dword v7, v6, s[26:27] offset:{4*k}")
    T0, T1, T2, T3 = "s48", "s49", "s50", "s51"
    TAU = [T0, T1, T2, T3]
    def tags_from_epoch(inc=1):
        A(f"s_add_u32 s52, s52, {inc}")
        A("s_and_b32 s48, s52, 0xff")
        A("s_xor_b32 s49, s48, 0x55"); A("s_xor_b32 s50, s48, 0xaa"); A("s_xor_b32 s51, s48, 0xff")
    uid = [0]
    def nid():
        uid[0] += 1; return uid[0]
    def poll(loads, acc, acc2, sleep, gate=None, first_mask=None):
        n = nid()
        A(f"s_branch L_poll{n}")
        A.label(f"L_pollr{n}")
        if sleep: A(f"s_sleep {sleep}")
        if gate: gate()
        A("s_add_u32 s53, s53, 1")
        A(f"s_cmp_gt_u32 s53, {spin}")
        A("s_cbranch_scc1 L_end")
        A.label(f"L_poll{n}")
        for q, (d, va, off) in enumerate(loads):
            if first_mask is not None and q == 0:
                A("s_mov_b32 s72, exec_hi"); A(f"s_and_b32 exec_hi, exec_hi, {hex(first_mask)}")
            A(f"global_load_dwordx4 v[{d}:{d+3}], v{va}, s[26:27] offset:{off} {pflags}")
            if first_mask is not None and q == 0:
                A("s_mov_b32 exec_hi, s72")
        for q, (d, va, off) in enumerate(loads):
            A(f"s_waitcnt vmcnt({len(loads)-1-q})")
            if q == 0:
                A(f"v_xor_b32 v{acc}, {T0}, v{d}")
                A(f"v_xor_b32 v{acc2}, {T1}, v{d+1}")
            else:
                A(f"v_bitop3_b32 v{acc}, v{acc}, v{d}, {T0} bitop3:0xf6")
                A(f"v_bitop3_b32 v{acc2}, v{acc2}, v{d+1}, {T1} bitop3:0xf6")
            A(f"v_bitop3_b32 v{acc}, v{acc}, v{d+2}, {T2} bitop3:0xf6")
            A(f"v_bitop3_b32 v{acc2}, v{acc2}, v{d+3}, {T3} bitop3:0xf6")
        A(f"v_bitop3_b32 v{acc}, v{acc}, v{acc2}, v2 bitop3:0x54")
        A(f"v_cmp_ne_u32 vcc, 0, v{acc}")
        A("s_and_b64 exec, exec, vcc")
        A(f"s_cbranch_scc1 L_pollr{n}")
        A("s_mov_b64 exec, -1")
    def publish(stores):
        n = nid()
        A("s_cmp_eq_u32 s78, 1")
        A(f"s_cbranch_scc0 L_ps{n}")
        for va, d, off in stores: A(f"global_store_dwordx4 v{va}, v[{d}:{d+3}], s[26:27] offset:{off}")
        A.label(f"L_pd{n}")
        slow.append((n, stores))
    slow = []
    def ldswait(off, val, vt, sleep=1):
        n = nid()
        A(f"s_branch L_lw{n}")
        A.label(f"L_lwr{n}")
        if sleep: A(f"s_sleep {sleep}")
        A("s_add_u32 s53, s53, 1")
        A(f"s_cmp_gt_u32 s53, {spin}")
        A("s_cbranch_scc1 L_end")
        A.label(f"L_lw{n}")
        A(f"ds_read_b32 v{vt}, v1 offset:{off}")
        A("s_waitcnt lgkmcnt(0)")
        A(f"v_cmp_ne_u32 vcc, {val}, v{vt}" if val else f"v_cmp_eq_u32 vcc, 0, v{vt}")
        A(f"s_cbranch_vccnz L_lwr{n}")
    def ldsinc(off, vt):
        A(f"v_mov_b32 v{vt}, 1")
        A("s_mov_b64 exec, 1")
        A(f"ds_add_u32 v1, v{vt} offset:{off}")
        A("s_mov_b64 exec, -1")
    def getmode(vt):
        ldswait(FL_MODE, None, vt)
        A(f"v_readfirstlane_b32 s78, v{vt}")
    def srd(s, lo, size):
        A(f"s_mov_b32 s{s}, s{lo}"); A(f"s_mov_b32 s{s+1}, s{lo+1}")
        A(f"s_mov_b32 s{s+2}, {size}"); A(f"s_mov_b32 s{s+3}, 0x20000")
    def allred8(op, v):
        A(f"{op}_dpp v{v}, v{v}, v{v} quad_perm:[1,0,3,2] {DPP}")
        A(f"{op}_dpp v{v}, v{v}, v{v} quad_perm:[2,3,0,1] {DPP}")
        A(f"{op}_dpp v{v}, v{v}, v{v} row_half_mirror {DPP}")
    def allred_rows(op, v, t):
        A(f"v_mov_b32 v{t}, v{v}"); A(f"v_permlane16_swap_b32 v{v}, v{t}"); A(f"{op} v{v}, v{v}, v{t}")
        A(f"v_mov_b32 v{t}, v{v}"); A(f"v_permlane32_swap_b32 v{v}, v{t}"); A(f"{op} v{v}, v{v}, v{t}")
    def reduce32(L):
        for a in L: A(f"v_permlane32_swap_b32 v{a}, v{a+2}"); A(f"v_permlane32_swap_b32 v{a+1}, v{a+3}")
        for a in L: A(f"v_pk_add_f32 v[{a}:{a+1}], v[{a}:{a+1}], v[{a+2}:{a+3}]")
        for a in L: A(f"v_permlane16_swap_b32 v{a}, v{a+1}")
        for a in L: A(f"v_add_f32 v{a}, v{a}, v{a+1}")
        for r in (8, 4, 2):
            for a in L: A(f"v_add_f32_dpp v{a}, v{a}, v{a} row_ror:{r} {DPP}")
    def reduce_f(L):
        for a in L:
            for k in range(2): A(f"v_pk_add_f32 v[{a+2*k}:{a+2*k+1}], v[{a+2*k}:{a+2*k+1}], v[{a+4+2*k}:{a+4+2*k+1}]")
            for k in range(2): A(f"v_pk_add_f32 v[{a+8+2*k}:{a+8+2*k+1}], v[{a+8+2*k}:{a+8+2*k+1}], v[{a+12+2*k}:{a+12+2*k+1}]")
        for a in L:
            for k in range(2): A(f"v_pk_add_f32 v[{a+2*k}:{a+2*k+1}], v[{a+2*k}:{a+2*k+1}], v[{a+8+2*k}:{a+8+2*k+1}]")
        for a in L: A(f"v_permlane32_swap_b32 v{a}, v{a+2}"); A(f"v_permlane32_swap_b32 v{a+1}, v{a+3}")
        for a in L: A(f"v_pk_add_f32 v[{a}:{a+1}], v[{a}:{a+1}], v[{a+2}:{a+3}]")
        for a in L: A(f"v_permlane16_swap_b32 v{a}, v{a+1}")
        for a in L: A(f"v_add_f32 v{a}, v{a}, v{a+1}")
        for a in L: A(f"v_add_f32_dpp v{a}, v{a}, v{a} row_ror:8 {DPP}")
    def dma(vaddr, srdn, sbase, step, n, ldsbase, flags):
        for t in range(n):
            A(f"s_add_u32 s72, s{sbase}, {t*step}")
            A(f"s_mov_b32 m0, {ldsbase + t*1024}")
            A(f"buffer_load_dwordx4 v{vaddr}, s[{srdn}:{srdn+3}], s72 offen {flags} lds")
    def silu(dst, src, n):
        for r in range(n): A(f"v_mul_f32 v{dst+r}, {hex(NLOG2E)}, v{src+r}")
        for r in range(n): A(f"v_exp_f32 v{dst+r}, v{dst+r}")
        for r in range(n): A(f"v_add_f32 v{dst+r}, 1.0, v{dst+r}")
        for r in range(n): A(f"v_rcp_f32 v{dst+r}, v{dst+r}")
        for r in range(n): A(f"v_mul_f32 v{dst+r}, v{dst+r}, v{src+r}")
        for r in range(n): A(f"v_cvt_pk_bf16_f32 v{dst+r}, 0, v{dst+r}")
    def tile_reads(base, nks, dst):
        for nt in range(4):
            for s in range(nks):
                for t2 in range(2):
                    q = dst + 4*(nt*nks + s) + 2*t2
                    A(f"ds_read_b64_tr_b16 v[{q}:{q+1}], v15 offset:{base + s*4096 + t2*512 + nt*32}")
    def tile_mfma(acc, nks, wf, xf):
        for s in range(nks):
            for nt in range(4):
                q = wf + 4*(nt*nks + s)
                A(f"v_mfma_f32_16x16x32_bf16 v[{acc+4*nt}:{acc+4*nt+3}], v[{q}:{q+3}], v[{xf+4*s}:{xf+4*s+3}], " + ("0" if s == 0 else f"v[{acc+4*nt}:{acc+4*nt+3}]"))
    def ex16():
        A("s_mov_b32 exec_lo, 0x000f000f"); A("s_mov_b32 exec_hi, 0x000f000f")
    CSC = f2u(math.log2(math.e))
    QSC = f2u(128.0 ** -0.5)
    NLOG2E = f2u(-math.log2(math.e))

    stamp(0)
    if padto: A("s_memrealtime s[96:97]")
    A("s_load_dwordx16 s[4:19], s[0:1], 0")
    A("s_load_dwordx8 s[20:27], s[0:1], 64")
    A("v_lshrrev_b32 v1, 6, v0")
    A("s_cmp_ge_u32 s2, 256")
    A("s_cbranch_scc1 L_end")
    A("v_readfirstlane_b32 s3, v1")
    A("v_and_b32 v0, 63, v0")
    A("s_and_b32 s28, s2, 7")
    A("s_lshr_b32 s29, s2, 3")
    A("s_lshr_b32 s30, s2, 6")
    A("s_and_b32 s31, s29, 7")
    A("s_lshr_b32 s76, s29, 2")
    A("s_and_b32 s75, s2, 31")
    A("v_lshrrev_b32 v9, 3, v0"); A("v_and_b32 v8, 7, v0"); A("v_lshlrev_b32 v8, 4, v8")
    A(f"s_sub_u32 s54, s3, {NH}")
    A("s_cbranch_scc1 L_help")
    def common():
        A("s_lshl_b32 s77, s28, 2"); A("s_add_u32 s77, s77, s30")
        A("s_mov_b32 s53, 0")
        A(f"v_mov_b32 v1, {L_FLAG}")
        A("v_mov_b32 v2, 0xffffff00")
        A("v_lshrrev_b32 v3, 4, v0")
        A("v_and_b32 v11, 3, v0")
        A("v_bfe_u32 v10, v0, 2, 2")

    KR, VR = 32, 96
    DT = 16
    QF = 12
    A("v_lshl_add_u32 v6, v9, 13, v8")
    A("s_lshl_b32 s56, s30, 4"); A("s_add_u32 s56, s56, s54"); A("s_lshl_b32 s56, s56, 6"); A("s_add_u32 s56, s56, s28")
    A("s_lshl_b32 s56, s56, 3"); A("s_add_u32 s56, s56, s31"); A("s_lshl_b32 s56, s56, 7")
    A("s_lshl_b32 s73, s54, 10")
    A("s_mov_b32 s46, 0x400000"); A("s_mov_b32 s47, 0x20000")
    A(f"s_add_u32 m0, s73, {L_WQ}")
    A("s_add_u32 s57, s56, 0x80000")
    A("v_mul_u32_u24 v7, 3584, v9"); A("v_add_u32 v7, v7, v8")
    A("s_lshl_b32 s72, s76, 3"); A("s_add_u32 s72, s72, s54"); A(f"s_mul_i32 s58, s72, {8*3584}"); A("s_lshl_b32 s72, s75, 7"); A("s_add_u32 s58, s58, s72")
    A("s_cmp_lt_u32 s75, 28")
    A("s_cselect_b32 s42, 0x1c0000, 0")
    A("s_mov_b32 s43, s47")
    A("s_waitcnt lgkmcnt(0)")
    stamp(1)
    A("s_mov_b64 s[44:45], s[10:11]")
    issued = []
    def ldK(i):
        A(f"buffer_load_dwordx4 v[{KR+4*i}:{KR+4*i+3}], v4, s[32:35], s{56+i} offen {kvflags}"); issued.append(("K", i))
    def ldV(i):
        A(f"buffer_load_dwordx4 v[{VR+4*i}:{VR+4*i+3}], v5, s[36:39], s{56+i} offen {kvflags}"); issued.append(("V", i))
    def ldW(tag, va, sr, so, lds):
        if lds is not None: A(f"s_add_u32 m0, s73, {lds}")
        A(f"buffer_load_dwordx4 v{va}, s[{sr}:{sr+3}], s{so} offen {wflags} lds"); issued.append(tag)
    def waitfor(tag):
        n = len(issued) - 1 - issued.index(tag)
        A(f"s_waitcnt vmcnt({n})")
    ldW("q0", 6, 44, 56, None)
    A("s_mov_b64 s[40:41], s[16:17]")
    ldW("q1", 6, 44, 57, L_WQ + 8192)
    ldW("g", 7, 40, 58, L_GA)
    A("s_mov_b64 s[36:37], s[18:19]"); A("s_mov_b32 s38, s42"); A("s_mov_b32 s39, 0x20000")
    if cap > 3: ldW("u", 7, 36, 58, L_UP)
    A("s_load_dword s52, s[26:27], 0")
    A("s_mov_b64 s[32:33], s[6:7]"); A("s_mov_b32 s34, 0x8000000"); A("s_mov_b32 s35, 0x20000")
    common()
    A("v_lshlrev_b32 v4, 4, v11"); A("v_lshl_add_u32 v4, v10, 8, v4"); A("v_lshl_add_u32 v4, v3, 6, v4")
    A("v_lshlrev_b32 v5, 4, v0")
    A("s_lshl_b32 s55, s30, 3"); A("s_add_u32 s55, s55, s28"); A("s_lshl_b32 s55, s55, 22")
    A("s_lshl_b32 s72, s31, 17"); A("s_add_u32 s55, s55, s72"); A("s_add_u32 s55, s55, 0x300000")
    A("s_add_u32 s72, s31, s28"); A("s_lshl_b32 s72, s72, 12"); A("s_add_u32 s74, s73, s72")
    A("s_lshl_b32 s72, s30, 15"); A("s_add_u32 s74, s74, s72")
    def koff(i):
        A(f"s_add_u32 s{56+i}, s74, {i*8192}"); A(f"s_and_b32 s{56+i}, s{56+i}, 0x1ffff"); A(f"s_add_u32 s{56+i}, s{56+i}, s55")
    A("s_barrier")
    A("s_and_b32 s72, s54, 1"); A("s_lshl_b32 s72, s72, 6")
    A("v_and_b32 v6, 1, v3"); A("v_lshlrev_b32 v6, 5, v6"); A("v_or_b32 v6, s72, v6"); A("v_xor_b32 v6, v6, v8")
    A("v_lshl_add_u32 v6, v9, 10, v6")
    if cap <= 3:
        A(f"s_waitcnt vmcnt({cap-1})")
        ldW("u", 7, 36, 58, L_UP)
    A("s_mov_b64 s[36:37], s[8:9]"); A("s_mov_b32 s38, 0x8000000")
    A("s_cmp_lt_u32 s29, 28"); A("s_cselect_b32 s46, 0x1c0000, 0"); A("s_mov_b64 s[44:45], s[20:21]")
    A("s_mov_b64 s[40:41], s[12:13]"); A("s_mov_b32 s42, 0x400000")
    A("v_and_b32 v7, 1, v0"); A("v_lshlrev_b32 v7, 4, v7"); A("v_mov_b32 v8, 0xffff"); A("v_lshlrev_b32 v7, v7, v8")
    A("v_cmp_gt_u32 vcc, 2, v11")
    A("v_cndmask_b32 v8, 0, v7, vcc")
    A("v_cndmask_b32 v9, v7, 0, vcc")
    A(f"s_mov_b32 s79, {hex(CSC)}")
    Z = lambda i: KR + 4*i
    O0, O1 = 16, 20
    def c_q():
        A("s_waitcnt lgkmcnt(0)")
        tags_from_epoch(2)
        stamp(2)
        ldswait(FL_Q, None, 7)
        A("v_readfirstlane_b32 s78, v7")
        A(f"ds_read_b128 v[{QF}:{QF+3}], v5 offset:{L_QF}")
        A("s_waitcnt lgkmcnt(0)")
        stamp(3)
    def c_s(gq):
        for t in range(4):
            i = 4*gq + t
            A(f"v_mfma_f32_16x16x32_bf16 v[{DT+4*t}:{DT+4*t+3}], v[{KR+4*i}:{KR+4*i+3}], v[{QF}:{QF+3}], 0")
        for c in range(4):
            for t in range(4):
                z = Z(4*gq + t)
                if c == 0: A(f"v_mov_b32_dpp v{z}, v{DT+4*t} quad_perm:[0,0,0,0] {DPP}")
                else: A(f"v_add_f32_dpp v{z}, v{DT+4*t+c}, v{z} quad_perm:[{c},{c},{c},{c}] {DPP}")
        for t in range(4): A(f"v_cvt_pk_bf16_f32 v{Z(4*gq+t)}, 0, v{Z(4*gq+t)}")
        for t in range(4): A(f"v_mul_f32 v{Z(4*gq+t)}, {hex(QSC)}, v{Z(4*gq+t)}")
        for t in range(4): A(f"v_cvt_pk_bf16_f32 v{Z(4*gq+t)}, 0, v{Z(4*gq+t)}")
    def c_max():
        A(f"v_max3_f32 v16, v{Z(0)}, v{Z(1)}, v{Z(2)}"); A(f"v_max3_f32 v17, v{Z(3)}, v{Z(4)}, v{Z(5)}")
        A(f"v_max3_f32 v18, v{Z(6)}, v{Z(7)}, v{Z(8)}"); A(f"v_max3_f32 v19, v{Z(9)}, v{Z(10)}, v{Z(11)}")
        A(f"v_max3_f32 v16, v16, v{Z(12)}, v{Z(13)}"); A(f"v_max3_f32 v17, v17, v{Z(14)}, v{Z(15)}")
        A("v_max3_f32 v16, v16, v17, v18"); A("v_max_f32 v16, v16, v19")
        allred_rows("v_max_f32", 16, 18)
        A("v_mul_f32 v18, s79, v16")
        for i in range(16): A(f"v_fma_f32 v{Z(i)}, v{Z(i)}, s79, -v18")
    def c_exp():
        for i in range(16): A(f"v_exp_f32 v{Z(i)}, v{Z(i)}")
        for k in range(4): A(f"v_add_f32 v{20+k}, v{Z(k)}, v{Z(k+4)}")
        for k in range(4): A(f"v_add_f32 v{20+k}, v{20+k}, v{Z(k+8)}")
        for k in range(4): A(f"v_add_f32 v{20+k}, v{20+k}, v{Z(k+12)}")
        A("v_add_f32 v20, v20, v21"); A("v_add_f32 v22, v22, v23"); A("v_add_f32 v17, v20, v22")
        allred_rows("v_add_f32", 17, 18)
        A("s_lshl_b32 s72, s54, 3")
        A("v_lshl_add_u32 v7, v10, 6, s72")
        A(f"ds_write_b64 v7, v[16:17] offset:{L_ST}")
        ldsinc(FL_ST, 7)
    def c_p():
        for i in range(16): A(f"v_cvt_pk_bf16_f32 v{Z(i)+1}, v{Z(i)}, v{Z(i)}")
        for i in range(16):
            A(f"v_and_b32 v{Z(i)+2}, v{Z(i)+1}, v8"); A(f"v_and_b32 v{Z(i)+3}, v{Z(i)+1}, v9")
        stamp(4)
    def c_pv(i):
        A(f"v_mfma_f32_16x16x16_bf16 v[{O0}:{O0+3}], v[{Z(i)+2}:{Z(i)+3}], v[{VR+4*i}:{VR+4*i+1}], " + ("0" if i == 0 else f"v[{O0}:{O0+3}]"))
        A(f"v_mfma_f32_16x16x16_bf16 v[{O1}:{O1+3}], v[{Z(i)+2}:{Z(i)+3}], v[{VR+4*i+2}:{VR+4*i+3}], " + ("0" if i == 0 else f"v[{O1}:{O1+3}]"))
    def c_setup():
        A("s_lshl_b32 s72, s54, 13")
        A("s_lshl_b32 s56, s29, 16"); A("s_add_u32 s56, s56, s72"); A("s_lshl_b32 s74, s28, 7"); A("s_add_u32 s56, s56, s74")
        A("s_lshl_b32 s57, s77, 17"); A("s_add_u32 s57, s57, s72"); A("s_lshl_b32 s74, s31, 7"); A("s_add_u32 s57, s57, s74")
        A("s_add_u32 s58, s57, 0x10000")
        A(f"s_mul_i32 s72, s54, {ORP}"); A(f"s_add_u32 s72, s72, {L_ORED}"); A("v_add_u32 v24, s72, v5")
        A(f"v_mul_u32_u24 v25, {2*ORP}, v11")
        A("v_bfe_u32 v7, v0, 2, 1"); A("v_lshl_add_u32 v25, v7, 10, v25")
        A("v_lshrrev_b32 v7, 3, v0"); A("v_lshl_add_u32 v25, v7, 4, v25")
        A("s_lshl_b32 s72, s54, 7"); A(f"s_add_u32 s72, s72, {L_ORED}"); A("v_add_u32 v25, s72, v25")
        A("s_lshl_b32 s72, s54, 4"); A("v_lshl_add_u32 v26, v3, 2, s72")
        A("s_lshl_b32 s72, s77, 3"); A("s_add_u32 s72, s72, s31"); A("s_lshl_b32 s72, s72, 11")
        A("s_lshl_b32 s74, s54, 8"); A("s_add_u32 s72, s72, s74"); A(f"s_add_u32 s72, s72, {WS_OBOX}")
        A("v_lshrrev_b32 v7, 2, v0"); A("v_lshl_add_u32 v27, v7, 4, s72")
        A("v_mov_b32 v28, 1")
        A("s_and_b32 s74, s54, 3")
        A("v_and_b32 v7, 1, v3"); A("v_bfe_u32 v31, v0, 3, 1"); A("v_lshl_or_b32 v31, v7, 1, v31"); A("v_xor_b32 v31, s74, v31"); A("v_lshlrev_b32 v31, 5, v31")
        A("v_lshl_add_u32 v30, v3, 3, v10"); A("v_lshl_add_u32 v31, v30, 7, v31"); A("v_lshl_add_u32 v31, v11, 3, v31")
        A("s_lshl_b32 s72, s28, 15"); A("s_lshl_b32 s74, s74, 8"); A("s_add_u32 s72, s72, s74")
        A("s_lshl_b32 s74, s29, 10"); A("s_add_u32 s72, s72, s74"); A(f"s_add_u32 s72, s72, {WS_QBOX}")
        A("v_lshlrev_b32 v30, 5, v11"); A("v_lshl_add_u32 v30, v7, 4, v30"); A("v_lshrrev_b32 v7, 1, v3"); A("v_lshl_add_u32 v30, v7, 7, v30")
        A("v_add_u32 v30, s72, v30")
    def c_f():
        ldswait(FL_F, 3, 7)
        A(f"ds_read_b32 v12, v26 offset:{L_F}")
        A(f"ds_read_b128 v[96:99], v5 offset:{L_HB}"); A(f"ds_read_b128 v[100:103], v5 offset:{L_HB + 1024}")
    seq = [("K", i) for i in range(16)] + [("V", i) for i in range(16)] + ["d", "o0", "o1"]
    chunks = [(("K", 3), lambda: (c_q(), c_s(0))), (("K", 7), lambda: c_s(1)), (("K", 11), lambda: c_s(2)), (("K", 15), lambda: c_s(3)),
              (("K", 15), c_max), (("K", 15), c_exp), (("K", 15), c_p)]
    told = set(); npv = 0
    for n_, tag in enumerate(seq):
        if tag[0] == "K": koff(tag[1])
        c = cap if n_ < 16 + 8 else (cap2 or cap)
        A(f"s_waitcnt vmcnt({c-1})")
        done = issued[:max(0, len(issued) - (c - 1))]
        if tag == "o1":
            while npv < 16 and ("V", npv) in done:
                c_pv(npv); npv += 1
        if tag[0] == "K": ldK(tag[1])
        elif tag[0] == "V": ldV(tag[1])
        elif tag == "d": ldW("d", 6, 44, 56, L_DN)
        elif tag == "o0": ldW("o0", 6, 40, 57, L_WO)
        else: ldW("o1", 6, 40, 58, L_WO + 8192)
        for t_, fl in (("q1", FL_WQ), ("u", FL_GU)):
            if t_ in done and t_ not in told:
                told.add(t_); ldsinc(fl, 7)
        if chunks:
            if n_ >= s_at and chunks[0][0] in done: chunks.pop(0)[1]()
        else:
            while npv < 16 and ("V", npv) in done:
                c_pv(npv); npv += 1
            if tag == ("V", vp_at): c_setup()
            if tag == f_at: c_f()
    while npv < 16:
        waitfor(("V", npv)); c_pv(npv); npv += 1
    A("s_waitcnt lgkmcnt(0)")
    stamp(5)
    for k in range(4): A(f"v_pk_mul_f32 v[{16+2*k}:{17+2*k}], v[{16+2*k}:{17+2*k}], v[12:13] op_sel_hi:[1,0]")
    A("ds_write_b128 v24, v[16:19]")
    A("ds_write_b128 v24, v[20:23] offset:1024")
    A("s_mov_b64 exec, 1")
    A(f"ds_add_u32 v1, v28 offset:{FL_O}")
    A("s_mov_b64 exec, -1")
    A("s_branch L_or")
    A.label("L_orr")
    A("s_waitcnt lgkmcnt(0)")
    if orsleep: A(f"s_sleep {orsleep}")
    A("s_add_u32 s53, s53, 1")
    A(f"s_cmp_gt_u32 s53, {spin}")
    A("s_cbranch_scc1 L_end")
    A.label("L_or")
    A(f"ds_read_b32 v7, v1 offset:{FL_O}")
    A("ds_read_b128 v[32:35], v25")
    A(f"ds_read_b128 v[36:39], v25 offset:{ORP}")
    A("s_waitcnt lgkmcnt(2)")
    A("v_cmp_ne_u32 vcc, 8, v7")
    A("s_cbranch_vccnz L_orr")
    A("s_waitcnt lgkmcnt(0)")
    for k in range(2): A(f"v_pk_add_f32 v[{32+2*k}:{33+2*k}], v[{32+2*k}:{33+2*k}], v[{36+2*k}:{37+2*k}]")
    for qp in ("[1,0,3,2]", "[2,3,0,1]"):
        for k in range(4): A(f"v_add_f32_dpp v{32+k}, v{32+k}, v{32+k} quad_perm:{qp} {DPP}")
    A("s_mov_b32 exec_lo, 0x11111111"); A("s_mov_b32 exec_hi, 0x11111111")
    for k in range(4): A(f"v_and_or_b32 v{32+k}, v{32+k}, v2, {TAU[k]}")
    publish([(27, 32, 0)])
    A("s_mov_b64 exec, 1")
    A(f"ds_add_u32 v1, v28 offset:{FL_OP}")
    stamp(6)
    A("s_waitcnt vmcnt(1)")
    A(f"ds_add_u32 v1, v28 offset:{FL_WO}")
    stamp(9)
    A("s_mov_b64 exec, -1")
    if dbg & 8: A("s_branch L_kvdone")
    A("s_cmp_gt_u32 s54, 3")
    A("s_cbranch_scc1 L_down")
    if hint:
        A("s_cmp_lg_u32 s54, 2"); A("s_cbranch_scc1 L_nh")
        A(f"s_cmp_lg_u32 s29, {hidx}"); A("s_cbranch_scc1 L_kvdone")
        A("s_lshl_b32 s72, s28, 7"); A(f"s_add_u32 s72, s72, {WS_HINT}"); A("v_lshl_add_u32 v4, v0, 10, s72")
        for k in range(4): A(f"v_mov_b32 v{32+k}, {TAU[k]}")
        if hmode == "lds":
            ldswait(FL_PD, 4, 7, 0)
        else:
            A("s_lshl_b32 s72, s28, 16"); A(f"s_add_u32 s72, s72, {WS_OBOX}"); A("v_lshl_add_u32 v8, v0, 11, s72")
            A("s_mov_b32 exec_hi, 0")
            poll([(48, 8, 0)], 6, 7, 0)
        A("s_mov_b64 exec, 0xff")
        A("global_store_dwordx4 v4, v[32:35], s[26:27] sc1")
        if wb:
            if wb >= 2: ldswait(FL_SP, 4, 7, 0)
            if wb > 2: A(f"s_sleep {wb - 2}")
            A("buffer_wbl2 sc1")
        A("s_branch L_kvdone")
        A.label("L_nh")
    A("s_cmp_gt_u32 s54, 1")
    A("s_cbranch_scc1 L_kvdone")
    A("s_cmp_lt_u32 s2, 64")
    A("s_cbranch_scc0 L_kvdone")
    A("s_lshl_b32 s74, s28, 3"); A("s_add_u32 s74, s74, s29")
    A("s_lshl_b32 s72, s74, 12"); A(f"s_add_u32 s72, s72, {WS_SIN}"); A("v_lshl_add_u32 v4, v0, 4, s72")
    A("v_bfe_u32 v26, v0, 1, 2"); A("v_lshlrev_b32 v26, 10, v26")
    A("v_and_b32 v7, 1, v0"); A("v_lshl_add_u32 v26, v7, 3, v26"); A("v_lshl_add_u32 v26, v3, 1, v26")
    A("s_lshl_b32 s72, s74, 4"); A("v_add_u32 v26, s72, v26")
    A("v_lshlrev_b32 v24, 3, v0")
    A("s_cmp_eq_u32 s54, 0")
    A("s_cbranch_scc1 L_fs")
    for k in range(4): A(f"v_mov_b32 v{60+k}, {TAU[k]}")
    A("global_load_ushort v65, v26, s[4:5]")
    A("s_lshl_b32 s72, s28, 15"); A("s_lshl_b32 s74, s29, 7"); A("s_add_u32 s72, s72, s74"); A(f"s_add_u32 s72, s72, {WS_QBOX}")
    A("v_lshrrev_b32 v8, 3, v0"); A("v_lshlrev_b32 v8, 10, v8"); A("v_and_b32 v7, 7, v0"); A("v_lshl_add_u32 v8, v7, 4, v8"); A("v_add_u32 v8, s72, v8")
    for t in range(1, 4): A(f"v_add_u32 v{11+t}, {8192*t}, v8")
    ldswait(FL_FP, 4, 7, 0)
    poll([(60, 14, 0), (48, 8, 0), (52, 12, 0), (56, 13, 0)], 6, 7, fsleep, first_mask=0)
    reduce_f([48])
    A("v_cvt_pk_bf16_f32 v48, 0, v48")
    A("v_lshlrev_b32 v65, 16, v65")
    silu(64, 48, 1)
    A(f"ds_write_b64 v24, v[64:65] offset:{L_GX}")
    A("s_mov_b64 exec, 1")
    A(f"ds_add_u32 v1, v28 offset:{FL_H}")
    stamp(7)
    A("s_branch L_kvdone")
    A.label("L_fs"); A.reset()
    if hint:
        A("s_lshl_b32 s72, s28, 10"); A(f"s_add_u32 s72, s72, {WS_HINT}"); A("v_lshl_add_u32 v8, v0, 7, s72")
        ldswait(FL_OB, 4, 7, 0)
        if hown:
            A("s_lshl_b32 s72, 1, s28"); A("s_xor_b32 exec_lo, s72, 0xff"); A("s_mov_b32 exec_hi, 0")
        else: A("s_mov_b64 exec, 0xff")
        poll([(48, 8, 0)], 6, 7, 0)
        ldswait(FL_SP, 4, 7, 0)
        if hdelay: A(f"s_sleep {hdelay}")
    else:
        ldswait(FL_SP, 4, 7, 0)
        if sdelay: A(f"s_sleep {sdelay}")
    stamp(7)
    poll([(32, 4, 0), (36, 4, 1024), (40, 4, 2048), (44, 4, 3072)], 6, 7, psleep)
    stamp(8)
    A(f"ds_read_b32 v7, v1 offset:{FL_H}")
    A(f"ds_read_b64 v[64:65], v24 offset:{L_GX}")
    reduce_f([32])
    A("v_cvt_pk_bf16_f32 v32, 0, v32")
    A("s_waitcnt lgkmcnt(0)")
    A("v_cmp_ne_u32 vcc, 0, v7")
    A("s_cbranch_vccnz L_gok")
    ldswait(FL_H, None, 7, 0)
    A(f"ds_read_b64 v[64:65], v24 offset:{L_GX}")
    A("s_waitcnt lgkmcnt(0)")
    A.label("L_gok")
    A("v_mul_f32 v32, v32, v64")
    A("v_cvt_pk_bf16_f32 v32, 0, v32")
    A("v_add_f32 v32, v32, v65")
    A("v_cvt_pk_bf16_f32 v32, v32, v32")
    A("s_mov_b32 exec_lo, 0x00ff00ff"); A("s_mov_b32 exec_hi, 0x00ff00ff")
    A("global_store_short v26, v32, s[22:23]")
    A("s_cmp_lg_u32 s2, 0")
    A("s_cbranch_scc1 L_kvdone")
    A("s_mov_b64 exec, 1")
    A("v_mov_b32 v5, 0"); A("v_mov_b32 v6, s52")
    A("global_store_dword v5, v6, s[26:27]")
    if padto:
        A.label("L_pad")
        A("s_memrealtime s[98:99]"); A("s_waitcnt lgkmcnt(0)"); A("s_sub_u32 s98, s98, s96")
        A(f"s_cmp_lt_u32 s98, {padto}"); A("s_cbranch_scc1 L_pad")
    A("s_branch L_kvdone")
    A.label("L_down"); A.reset()
    A("s_cmp_lt_u32 s29, 28")
    A("s_cbranch_scc0 L_kvdone")
    A("s_branch L_dn")
    A.label("L_dnr")
    A("s_waitcnt lgkmcnt(0)")
    A("s_add_u32 s53, s53, 1")
    A(f"s_cmp_gt_u32 s53, {spin}")
    A("s_cbranch_scc1 L_end")
    A.label("L_dn")
    A(f"ds_read_b32 v7, v1 offset:{FL_WO}")
    for s in range(2):
        for t2 in range(2):
            A(f"ds_read_b64_tr_b16 v[{48+4*s+2*t2}:{49+4*s+2*t2}], v31 offset:{L_DN + s*4096 + t2*512}")
    A("s_waitcnt lgkmcnt(4)")
    A("v_cmp_ne_u32 vcc, 8, v7")
    A("s_cbranch_vccnz L_dnr")
    for s in range(2):
        A(f"s_waitcnt lgkmcnt({2-2*s})")
        A(f"v_mfma_f32_16x16x32_bf16 v[40:43], v[{48+4*s}:{51+4*s}], v[{96+4*s}:{99+4*s}], " + ("0" if s == 0 else "v[40:43]"))
    ex16()
    for k in range(4): A(f"v_and_or_b32 v{40+k}, v{40+k}, v2, {TAU[k]}")
    publish([(30, 40, 0)])
    A("s_mov_b64 exec, 1")
    A(f"ds_add_u32 v1, v28 offset:{FL_FP}")
    A.label("L_kvdone")
    if stamps:
        A("s_waitcnt vmcnt(0)")
        stamp(10)
    dump_stamps()
    A("s_endpgm")

    A.raw(".p2align 6")
    A.label("L_help"); A.reset()
    A("s_setprio 3")
    common()
    for k in range(4): A(f"v_mov_b32 v{16+k}, 0")
    for k in range(4): A(f"ds_write_b128 v1, v[16:19] offset:{16*k}")
    A("v_and_b32 v4, 15, v0")
    A("s_mov_b32 s55, s76"); A("s_mov_b32 s54, s75")
    A("v_lshl_add_u32 v15, v3, 3, v10"); A("v_lshlrev_b32 v15, 7, v15"); A("v_lshl_add_u32 v15, v11, 3, v15")
    A("s_getreg_b32 s66, hwreg(HW_REG_XCC_ID)")
    A("s_and_b32 s66, s66, 15"); A("s_add_u32 s66, s66, 1"); A("s_mul_i32 s66, s66, 0x01010101")
    A("s_lshl_b32 s62, s28, 5"); A("s_add_u32 s72, s62, s29")
    A("v_mov_b32 v12, s72"); A("v_mov_b32 v14, s66"); A("v_lshl_add_u32 v13, v0, 2, s62")
    A("v_lshlrev_b32 v5, 4, v4"); A("v_lshl_add_u32 v5, v3, 10, v5")
    for t in range(4):
        A(f"s_add_u32 s72, s30, {t}"); A("s_and_b32 s72, s72, 3"); A("s_lshl_b32 s72, s72, 8")
        A(f"v_add_u32 v{32+t}, s72, v5")
    A("s_waitcnt lgkmcnt(0)")
    stamp(1)
    XR = 16
    A("s_load_dword s52, s[26:27], 0")
    A("s_cmp_lt_u32 s3, 2")
    A("s_cbranch_scc1 L_h01")
    A("s_cmp_eq_u32 s3, 2")
    A("s_cbranch_scc0 L_nox")
    A("s_mov_b64 exec, 1")
    A("global_store_byte v12, v14, s[24:25]")
    A("s_mov_b64 exec, -1")
    A.label("L_nox")
    A("s_barrier")
    A("s_waitcnt lgkmcnt(0)")
    tags_from_epoch()
    A("s_cmp_eq_u32 s3, 2")
    A("s_cbranch_scc0 L_tail")
    A("s_mov_b64 exec, 0xff")
    if xdelay: A(f"s_sleep {xdelay}")
    A("s_mov_b32 s78, 2")
    A("s_mov_b32 s67, 0")
    A.label("L_xr")
    A("s_add_u32 s67, s67, 1")
    A(f"s_cmp_gt_u32 s67, {xtries}")
    A("s_cbranch_scc1 L_xe")
    if xpoll == "s":
        A("s_load_dwordx8 s[32:39], s[24:25], s62 glc")
        A("s_mov_b32 s69, s66"); A("s_mov_b32 s68, s66")
        A("s_waitcnt lgkmcnt(0)")
        for k in range(4): A(f"s_xor_b64 s[{32+2*k}:{33+2*k}], s[{32+2*k}:{33+2*k}], s[68:69]")
        A("s_or_b64 s[32:33], s[32:33], s[34:35]"); A("s_or_b64 s[36:37], s[36:37], s[38:39]"); A("s_or_b64 s[32:33], s[32:33], s[36:37]")
        A("s_cbranch_scc1 L_xr")
    else:
        A(f"global_load_dword v14, v13, s[24:25] {pflags}")
        A("s_waitcnt vmcnt(0)")
        A("v_cmp_ne_u32 vcc, s66, v14")
        A("s_cbranch_vccnz L_xr")
    if not force_slow: A("s_mov_b32 s78, 1")
    A.label("L_xe")
    A("s_mov_b64 exec, -1")
    A("v_mov_b32 v16, s78")
    A(f"ds_write_b32 v1, v16 offset:{FL_MODE}")
    stamp(2)
    A("s_branch L_tail")
    A.label("L_h01")
    for t in range(4):
        A(f"global_load_dwordx4 v[{XR+4*t}:{XR+4*t+3}], v{32+t}, s[4:5]")
    A("s_barrier")
    FX = 32
    if dbg & 16:
        A("v_mov_b32 v16, 1"); A(f"ds_write_b32 v1, v16 offset:{FL_Q}"); A("v_mov_b32 v16, 3"); A(f"ds_write_b32 v1, v16 offset:{FL_F}"); A("s_branch L_done")
    A("s_waitcnt vmcnt(0)")
    stamp(2)
    for k in range(16):
        A(f"v_lshlrev_b32 v{FX+2*k}, 16, v{XR+k}")
        A(f"v_and_b32 v{FX+2*k+1}, 0xffff0000, v{XR+k}")
    S = 64
    for k in range(8): A(f"v_pk_add_f32 v[{S+2*k}:{S+2*k+1}], v[{FX+4*k}:{FX+4*k+1}], v[{FX+4*k+2}:{FX+4*k+3}]")
    for n in (4, 2, 1):
        for k in range(n): A(f"v_pk_add_f32 v[{S+2*k}:{S+2*k+1}], v[{S+2*k}:{S+2*k+1}], v[{S+2*(k+n)}:{S+2*(k+n)+1}]")
    A(f"v_add_f32 v12, v{S}, v{S+1}")
    for r in (8, 4, 2, 1): A(f"v_add_f32_dpp v12, v12, v12 row_ror:{r} {DPP}")
    A(f"v_mul_f32 v12, {hex(f2u(1/512))}, v12")
    for k in range(16):
        A(f"v_pk_add_f32 v[{S+2*k}:{S+2*k+1}], v[{FX+2*k}:{FX+2*k+1}], v[12:13] op_sel_hi:[1,0] neg_lo:[0,1] neg_hi:[0,1]")
    for k in range(4): A(f"v_pk_mul_f32 v[{96+2*k}:{96+2*k+1}], v[{S+2*k}:{S+2*k+1}], v[{S+2*k}:{S+2*k+1}]")
    for k in range(4, 16):
        q = k & 3
        A(f"v_pk_fma_f32 v[{96+2*q}:{96+2*q+1}], v[{S+2*k}:{S+2*k+1}], v[{S+2*k}:{S+2*k+1}], v[{96+2*q}:{96+2*q+1}]")
    A("v_pk_add_f32 v[96:97], v[96:97], v[98:99]"); A("v_pk_add_f32 v[100:101], v[100:101], v[102:103]")
    A("v_pk_add_f32 v[96:97], v[96:97], v[100:101]")
    A("v_add_f32 v14, v96, v97")
    for r in (8, 4, 2, 1): A(f"v_add_f32_dpp v14, v14, v14 row_ror:{r} {DPP}")
    A(f"v_mul_f32 v14, {hex(f2u(1/512))}, v14")
    A("v_cvt_pk_bf16_f32 v12, 0, v12")
    A("v_cvt_pk_bf16_f32 v14, 0, v14")
    A(f"v_add_f32 v14, {hex(f2u(1e-5))}, v14")
    A("v_cvt_pk_bf16_f32 v14, 0, v14")
    A("v_sqrt_f32 v14, v14")
    A("v_cvt_pk_bf16_f32 v14, 0, v14")
    A("v_rcp_f32 v14, v14")
    for k in range(4):
        A(f"v_pk_add_f32 v[{S+2*k}:{S+2*k+1}], v[{FX+2*k}:{FX+2*k+1}], v[12:13] op_sel_hi:[1,0] neg_lo:[0,1] neg_hi:[0,1]")
    for k in range(4): A(f"v_cvt_pk_bf16_f32 v{XR+k}, v{S+2*k}, v{S+2*k+1}")
    for k in range(4):
        A(f"v_lshlrev_b32 v{S+2*k}, 16, v{XR+k}")
        A(f"v_and_b32 v{S+2*k+1}, 0xffff0000, v{XR+k}")
    for k in range(4): A(f"v_pk_mul_f32 v[{S+2*k}:{S+2*k+1}], v[{S+2*k}:{S+2*k+1}], v[14:15] op_sel_hi:[1,0]")
    for k in range(4): A(f"v_cvt_pk_bf16_f32 v{XR+k}, v{S+2*k}, v{S+2*k+1}")
    A("s_mul_i32 s72, s3, 0x500")
    A(f"v_mul_u32_u24 v5, {XNP}, v3"); A("v_lshl_add_u32 v5, v4, 4, v5"); A("v_add_u32 v5, s72, v5")
    A(f"ds_write_b128 v5, v[{XR}:{XR+3}] offset:{L_XN}")
    A(f"v_mul_u32_u24 v5, {XNP}, v11"); A("v_lshl_add_u32 v5, v3, 4, v5")
    XF = 32
    WF = 96
    A("s_waitcnt lgkmcnt(0)")
    tags_from_epoch()
    A("s_cmp_eq_u32 s3, 0")
    A("s_cbranch_scc0 L_hf")

    for s in range(4): A(f"ds_read_b128 v[{XF+4*s}:{XF+4*s+3}], v5 offset:{L_XN + 64*s}")
    A("s_lshl_b32 s72, s28, 15"); A("s_lshl_b32 s73, s30, 11"); A("s_add_u32 s72, s72, s73")
    A("s_lshl_b32 s73, s31, 8"); A("s_add_u32 s72, s72, s73"); A(f"s_add_u32 s72, s72, {WS_QBOX}")
    A("v_lshlrev_b32 v5, 13, v11"); A("v_lshl_add_u32 v5, v3, 4, v5"); A("v_add_u32 v5, s72, v5")
    ldswait(FL_WQ, 8, 7)
    if dbg & 1:
        A("v_mov_b32 v16, 1"); A(f"ds_write_b32 v1, v16 offset:{FL_Q}"); A("v_mov_b32 v16, 3"); A(f"ds_write_b32 v1, v16 offset:{FL_F}"); A("s_branch L_done")
    stamp(3)
    tile_reads(L_WQ, 4, WF)
    A("s_waitcnt lgkmcnt(0)")
    tile_mfma(64, 4, WF, XF)
    A("s_lshl_b32 s72, s77, 13"); A(f"s_add_u32 s72, s72, {WS_QBOX + 4096}")
    A("v_lshlrev_b32 v8, 9, v10")
    A("v_lshl_add_u32 v8, v3, 7, v8"); A("v_lshl_add_u32 v8, v11, 5, v8"); A("v_add_u32 v8, s72, v8")
    getmode(7)
    for k in range(16): A(f"v_and_or_b32 v{64+k}, v{64+k}, v2, {TAU[k&3]}")
    ex16()
    publish([(5, 64+4*nt, nt*64) for nt in range(4)])
    A("s_mov_b64 exec, -1")
    stamp(4)
    if dbg & 32:
        A("v_mov_b32 v16, 1"); A(f"ds_write_b32 v1, v16 offset:{FL_Q}"); A("v_mov_b32 v16, 3"); A(f"ds_write_b32 v1, v16 offset:{FL_F}"); A("s_branch L_done")
    if qdelay: A(f"s_sleep {qdelay}")
    poll([(32 + 8*kq + 4*hf, 8, kq*2048 - 4096 + 16*hf) for kq in range(4) for hf in range(2)], 6, 7, hsleep)
    for k in range(4): A(f"v_pk_add_f32 v[{32+2*k}:{33+2*k}], v[{32+2*k}:{33+2*k}], v[{40+2*k}:{41+2*k}]")
    for k in range(4): A(f"v_pk_add_f32 v[{48+2*k}:{49+2*k}], v[{48+2*k}:{49+2*k}], v[{56+2*k}:{57+2*k}]")
    for k in range(4): A(f"v_pk_add_f32 v[{32+2*k}:{33+2*k}], v[{32+2*k}:{33+2*k}], v[{48+2*k}:{49+2*k}]")
    for k in range(4): A(f"v_cvt_pk_bf16_f32 v{40+k}, v{32+2*k}, v{33+2*k}")
    A("v_lshlrev_b32 v5, 4, v0")
    A(f"ds_write_b128 v5, v[40:43] offset:{L_QF}")
    A("v_mov_b32 v16, s78")
    A(f"ds_write_b32 v1, v16 offset:{FL_Q}")
    stamp(5)
    A("v_and_b32 v5, 31, v0"); A("v_lshlrev_b32 v6, 3, v5")
    A("s_lshl_b32 s72, s77, 9"); A(f"s_add_u32 s72, s72, {WS_SBOX}")
    A("v_lshl_add_u32 v8, v5, 4, s72")
    A("s_lshl_b32 s73, s31, 4"); A("s_add_u32 s73, s73, s72")
    A("v_lshrrev_b32 v9, 3, v5"); A("v_lshl_add_u32 v12, v9, 7, s73")
    A("v_and_b32 v5, 7, v0"); A("v_lshlrev_b32 v5, 4, v5"); A("v_lshl_add_u32 v5, v9, 2, v5")
    A(f"s_mov_b32 s64, {hex(CSC)}")
    if dbg & 4:
        A("v_mov_b32 v16, 1"); A("v_mov_b32 v16, 3"); A(f"ds_write_b32 v1, v16 offset:{FL_F}"); A("s_branch L_done")
    ldswait(FL_ST, 8, 19)
    A(f"ds_read_b64 v[16:17], v6 offset:{L_ST}")
    A("s_waitcnt lgkmcnt(0)")
    A("v_mov_b32 v20, v16")
    allred8("v_max_f32", 20)
    A(f"v_and_or_b32 v20, v20, v2, {T0}")
    A("v_sub_f32 v21, v16, v20"); A("v_mul_f32 v21, s64, v21"); A("v_exp_f32 v21, v21"); A("v_mul_f32 v21, v21, v17")
    allred8("v_add_f32", 21)
    A(f"v_and_or_b32 v21, v21, v2, {T1}")
    A(f"v_mov_b32 v22, {T2}"); A(f"v_mov_b32 v23, {T3}")
    A("s_mov_b32 exec_lo, 0x01010101"); A("s_mov_b32 exec_hi, 0")
    publish([(12, 20, 0)])
    A("s_mov_b32 exec_lo, -1")
    stamp(6)
    if stdelay: A(f"s_sleep {stdelay}")
    poll([(24, 8, 0)], 6, 7, hsleep)
    A("v_mov_b32 v20, v24")
    allred8("v_max_f32", 20)
    A("v_sub_f32 v21, v24, v20"); A("v_mul_f32 v21, s64, v21"); A("v_exp_f32 v21, v21"); A("v_mul_f32 v21, v21, v25")
    allred8("v_add_f32", 21)
    A("v_sub_f32 v22, v16, v20"); A("v_mul_f32 v22, s64, v22"); A("v_exp_f32 v22, v22")
    A("v_rcp_f32 v21, v21")
    A("v_mul_f32 v22, v22, v21")
    A("s_mov_b32 exec_hi, 0")
    A(f"ds_write_b32 v5, v22 offset:{L_F}")
    ldsinc(FL_F, 7)
    A("s_branch L_tail")

    A.label("L_hf"); A.reset()
    A("s_mov_b32 s63, 0x07060302")
    A("s_cmp_lt_u32 s54, 28")
    A("s_cbranch_scc0 L_hg")
    A("s_and_b32 s72, s55, 1"); A("s_lshl_b32 s72, s72, 7"); A("v_add_u32 v5, s72, v5")
    for s in range(2): A(f"ds_read_b128 v[{XF+4*s}:{XF+4*s+3}], v5 offset:{L_XN + 0x500 + 64*s}")
    A("s_lshl_b32 s72, s28, 16"); A("s_and_b32 s73, s29, 3"); A("s_lshl_b32 s73, s73, 11"); A("s_add_u32 s72, s72, s73")
    A("s_lshl_b32 s73, s55, 8"); A("s_add_u32 s72, s72, s73"); A(f"s_add_u32 s72, s72, {WS_OBOX}")
    A("v_lshrrev_b32 v20, 1, v3"); A("v_lshlrev_b32 v20, 13, v20"); A("v_lshl_add_u32 v20, v11, 5, v20")
    A("v_and_b32 v7, 1, v3"); A("v_lshl_add_u32 v20, v7, 4, v20"); A("v_add_u32 v20, s72, v20")
    for nt in range(1, 4): A(f"v_add_u32 v{20+nt}, {nt*16384}, v20")
    ldswait(FL_GU, 8, 12)
    if dbg & 2: A("s_branch L_done")
    stamp(3)
    tile_reads(L_GA, 2, WF); tile_reads(L_UP, 2, WF + 32)
    A("s_waitcnt lgkmcnt(0)")
    tile_mfma(64, 2, WF, XF); tile_mfma(80, 2, WF + 32, XF)
    getmode(12)
    for k in range(32): A(f"v_and_or_b32 v{64+k}, v{64+k}, v2, {TAU[k&3]}")
    ex16()
    publish([(20 + nt, 64+16*mat+4*nt, mat*128) for mat in range(2) for nt in range(4)])
    A("s_mov_b64 exec, -1")
    stamp(4)
    if dbg & 64: A("s_branch L_done")
    A("s_lshl_b32 s72, s54, 3"); A("s_add_u32 s65, s72, s55")
    A("s_lshl_b32 s72, s28, 5"); A("s_add_u32 s72, s72, s29"); A("s_lshl_b32 s72, s72, 11"); A(f"s_add_u32 s72, s72, {WS_OBOX}")
    A("v_lshlrev_b32 v5, 8, v9"); A("v_and_b32 v8, 7, v0"); A("v_lshl_add_u32 v5, v8, 4, v5"); A("v_add_u32 v5, s72, v5")
    A("s_lshl_b32 s72, s65, 7"); A(f"s_add_u32 s72, s72, {WS_HBOX}")
    A("v_lshl_add_u32 v8, v0, 4, s72")
    if fdelay: A(f"s_sleep {fdelay}")
    poll([(20, 5, 0), (24, 5, 128)], 6, 7, hsleep)
    for r in range(4): A(f"v_permlane32_swap_b32 v{20+r}, v{24+r}")
    for r in range(4): A(f"v_add_f32 v{20+r}, v{20+r}, v{24+r}")
    for r in range(4): A(f"v_mov_b32 v{24+r}, v{20+r}")
    for r in range(4): A(f"v_permlane16_swap_b32 v{20+r}, v{24+r}")
    for r in range(4): A(f"v_add_f32 v{20+r}, v{20+r}, v{24+r}")
    for r in range(4): A(f"v_add_f32_dpp v{20+r}, v{20+r}, v{20+r} row_ror:8 {DPP}")
    for r in range(4): A(f"v_cvt_pk_bf16_f32 v{20+r}, 0, v{20+r}")
    for r in range(4): A(f"v_permlane32_swap_b32 v{20+r}, v{24+r}")
    silu(28, 20, 4)
    for r in range(4): A(f"v_mul_f32 v{28+r}, v{28+r}, v{24+r}")
    for r in range(4): A(f"v_cvt_pk_bf16_f32 v{28+r}, 0, v{28+r}")
    for r in range(4): A(f"v_or_b32 v{28+r}, {TAU[r]}, v{28+r}")
    A("s_mov_b64 exec, 0xff")
    A("global_store_dwordx4 v8, v[28:31], s[26:27] sc1")
    A("s_mov_b64 exec, -1")
    stamp(5)
    A.label("L_hg")
    A("s_cmp_lt_u32 s29, 28")
    A("s_cbranch_scc0 L_hd")
    A("s_lshl_b32 s72, s29, 10"); A(f"s_add_u32 s72, s72, {WS_HBOX}")
    A("v_lshlrev_b32 v5, 5, v11"); A("v_lshl_add_u32 v5, v3, 7, v5"); A("v_add_u32 v5, s72, v5")
    ldswait(FL_ST, 8, 12, 8)
    ex16()
    poll([(32, 5, 0), (36, 5, 16), (40, 5, 512), (44, 5, 528)], 6, 7, hsleep)
    for k in range(8): A(f"v_perm_b32 v{48+k}, v{33+2*k}, v{32+2*k}, s63")
    A("v_lshlrev_b32 v5, 4, v0")
    A(f"ds_write_b128 v5, v[48:51] offset:{L_HB}"); A(f"ds_write_b128 v5, v[52:55] offset:{L_HB + 1024}")
    A.label("L_hd")
    ldsinc(FL_F, 7)
    stamp(6)

    A.label("L_tail"); A.reset()
    tags_from_epoch()
    stamp(7)
    if dbg & 8:
        A("s_cmp_lg_u32 s2, 0"); A("s_cbranch_scc1 L_done"); A("s_cmp_lg_u32 s3, 3"); A("s_cbranch_scc1 L_done")
        ldswait(FL_WO, 8, 12, 8)
        A("s_mov_b64 exec, 1"); A("v_mov_b32 v5, 0"); A("v_mov_b32 v6, s52"); A("global_store_dword v5, v6, s[26:27]"); A("s_branch L_done")
    A("v_lshrrev_b32 v9, 3, v0"); A("v_and_b32 v8, 7, v0")
    A("s_lshl_b32 s72, s28, 2"); A("s_add_u32 s72, s72, s3"); A("s_lshl_b32 s72, s72, 14"); A("s_lshl_b32 s73, s30, 9"); A("s_add_u32 s72, s72, s73")
    A(f"s_add_u32 s72, s72, {WS_OBOX}")
    A("v_lshlrev_b32 v28, 11, v9"); A("v_lshl_add_u32 v28, v8, 4, v28"); A("v_add_u32 v28, s72, v28")
    A(f"s_mul_i32 s72, s3, {OBP}")
    A("v_lshlrev_b32 v29, 3, v8"); A("v_lshl_add_u32 v29, v3, 6, v29"); A("v_add_u32 v29, s72, v29")
    A(f"v_mul_u32_u24 v30, {OBP}, v11"); A("v_lshl_add_u32 v30, v3, 4, v30")
    A("v_and_b32 v7, 1, v3"); A("v_bfe_u32 v31, v0, 3, 1"); A("v_lshl_or_b32 v31, v7, 1, v31"); A("v_xor_b32 v31, s3, v31")
    A("v_lshl_add_u32 v31, v31, 5, v15")
    A("s_lshl_b32 s72, s31, 3"); A("s_lshl_b32 s73, s3, 1"); A("s_add_u32 s72, s72, s73"); A("s_lshl_b32 s72, s72, 12")
    A("s_lshl_b32 s73, s77, 7"); A("s_add_u32 s72, s72, s73"); A(f"s_add_u32 s72, s72, {WS_SIN}")
    A("v_lshlrev_b32 v27, 5, v11"); A("v_lshl_add_u32 v27, v7, 4, v27"); A("v_lshrrev_b32 v7, 1, v3"); A("v_lshl_add_u32 v27, v7, 12, v27")
    A("v_add_u32 v27, s72, v27")
    A("s_lshl_b32 s72, s28, 15"); A("s_lshl_b32 s73, s29, 10"); A("s_add_u32 s72, s72, s73"); A("s_lshl_b32 s73, s3, 8"); A("s_add_u32 s72, s72, s73")
    A(f"s_add_u32 s72, s72, {WS_QBOX}"); A("v_lshl_add_u32 v26, v7, 7, s72")
    A("v_mov_b32 v25, 1")
    A("s_cmp_lg_u32 s3, 3"); A("s_cbranch_scc1 L_nps")
    ldsinc(FL_F, 12)
    if wbmid:
        A(f"s_cmp_lg_u32 s29, {hidx}"); A("s_cbranch_scc1 L_nps")
        ldswait(FL_ST, 8, 12, 8)
        A("buffer_wbl2 sc1")
    A.label("L_nps")
    ldswait(FL_F, 3, 12, 4)
    if ppre:
        ex16()
        if "s" in ppre: A("global_load_dword v24, v27, s[26:27] sc1")
        if "f" in ppre: A("global_load_dword v23, v26, s[26:27] sc1")
        A("s_mov_b64 exec, -1")
    if hint and hwarm:
        A("s_cmp_lg_u32 s3, 3"); A("s_cbranch_scc1 L_nhw"); A("s_cmp_lg_u32 s29, 0"); A("s_cbranch_scc1 L_nhw")
        A("s_lshl_b32 s72, s28, 10"); A(f"s_add_u32 s72, s72, {WS_HINT}"); A("v_lshl_add_u32 v21, v0, 7, s72")
        A("s_mov_b64 exec, 0xff")
        A("global_load_dword v21, v21, s[26:27] sc1")
        A("s_mov_b64 exec, -1")
        A.label("L_nhw")
    if owarm:
        A("s_lshl_b32 s72, s77, 3"); A("s_add_u32 s72, s72, s31"); A("s_lshl_b32 s72, s72, 11"); A("s_lshl_b32 s73, s3, 9"); A("s_add_u32 s72, s72, s73")
        A(f"s_add_u32 s72, s72, {WS_OBOX}"); A("v_lshl_add_u32 v22, v11, 7, s72")
        A("s_mov_b64 exec, 15")
        A("global_load_dword v22, v22, s[26:27] sc1")
        A("s_mov_b64 exec, -1")
    ldswait(FL_O, None, 12, 2)
    if not early: ldswait(FL_OP, 8, 12, 0)
    def ogate():
        n = nid()
        A("s_cmp_eq_u32 s70, 1"); A(f"s_cbranch_scc1 L_og{n}")
        ldswait(FL_OP, 8, 12, 0)
        A("s_mov_b32 s70, 1")
        A.label(f"L_og{n}")
    A("s_mov_b32 s70, 0")
    poll([(32 + 4*t, 28, 128*t) for t in range(4)], 6, 7, osleep, ogate if gate else None)
    stamp(8)
    def wreads():
        A(f"ds_read_b32 v7, v1 offset:{FL_WO}")
        for s in range(4):
            for t2 in range(2):
                A(f"ds_read_b64_tr_b16 v[{64+4*s+2*t2}:{65+4*s+2*t2}], v31 offset:{L_WO + s*4096 + t2*512}")
    if hint and hmode == "lds":
        A("s_mov_b64 exec, 1"); A(f"ds_add_u32 v1, v25 offset:{FL_PD}"); A("s_mov_b64 exec, -1")
    wreads()
    for k in range(8): A(f"v_permlane32_swap_b32 v{32+k}, v{40+k}")
    for k in range(4): A(f"v_pk_add_f32 v[{32+2*k}:{33+2*k}], v[{32+2*k}:{33+2*k}], v[{40+2*k}:{41+2*k}]")
    for k in range(4): A(f"v_permlane16_swap_b32 v{32+k}, v{36+k}")
    for k in range(2): A(f"v_pk_add_f32 v[{32+2*k}:{33+2*k}], v[{32+2*k}:{33+2*k}], v[{36+2*k}:{37+2*k}]")
    for k in range(4): A(f"v_add_f32_dpp v{32+k}, v{32+k}, v{32+k} row_ror:8 {DPP}")
    A("v_cvt_pk_bf16_f32 v32, v32, v33"); A("v_cvt_pk_bf16_f32 v33, v34, v35")
    A(f"ds_write_b64 v29, v[32:33] offset:{L_OB}")
    A("s_mov_b64 exec, 1")
    A(f"ds_add_u32 v1, v25 offset:{FL_OB}")
    A("s_mov_b64 exec, -1")
    def obreads():
        A(f"ds_read_b32 v6, v1 offset:{FL_OB}")
        for s in range(4): A(f"ds_read_b128 v[{48+4*s}:{51+4*s}], v30 offset:{L_OB + 64*s}")
    A("s_waitcnt lgkmcnt(2)")
    obreads()
    A("v_cmp_eq_u32 vcc, 8, v7")
    A("s_cbranch_vccnz L_ob")
    A.label("L_wor")
    A("s_add_u32 s53, s53, 1")
    A(f"s_cmp_gt_u32 s53, {spin}")
    A("s_cbranch_scc1 L_end")
    A("s_waitcnt lgkmcnt(0)")
    wreads()
    A("s_waitcnt lgkmcnt(0)")
    A("v_cmp_ne_u32 vcc, 8, v7")
    A("s_cbranch_vccnz L_wor")
    A("s_branch L_ob")
    A.label("L_obr")
    A("s_waitcnt lgkmcnt(0)")
    A("s_add_u32 s53, s53, 1")
    A(f"s_cmp_gt_u32 s53, {spin}")
    A("s_cbranch_scc1 L_end")
    obreads()
    A.label("L_ob")
    A("s_waitcnt lgkmcnt(4)")
    A("v_cmp_ne_u32 vcc, 4, v6")
    A("s_cbranch_vccnz L_obr")
    for s in range(4):
        A(f"s_waitcnt lgkmcnt({3-s})")
        A(f"v_mfma_f32_16x16x32_bf16 v[44:47], v[{64+4*s}:{67+4*s}], v[{48+4*s}:{51+4*s}], " + ("0" if s == 0 else "v[44:47]"))
    ex16()
    for k in range(4): A(f"v_and_or_b32 v{44+k}, v{44+k}, v2, {TAU[k]}")
    A("global_store_dwordx4 v27, v[44:47], s[26:27] sc1")
    A("s_mov_b64 exec, 1")
    A(f"ds_add_u32 v1, v25 offset:{FL_SP}")
    stamp(9)
    A.label("L_done")
    if stamps:
        A("s_waitcnt vmcnt(0)")
        stamp(10)
        dump_stamps()
    A.label("L_end")
    A("s_endpgm")
    for n, stores in slow:
        A.label(f"L_ps{n}"); A.reset()
        for va, d, off in stores: A(f"global_store_dwordx4 v{va}, v[{d}:{d+3}], s[26:27] offset:{off} sc1")
        A("s_nop 1")
        A(f"s_branch L_pd{n}")
    A.raw('.section .rodata,"a"'); A.raw(".p2align 6"); A.raw(f".amdhsa_kernel {NAME}_kernel")
    A.raw("  .amdhsa_next_free_vgpr 160"); A.raw("  .amdhsa_next_free_sgpr 102"); A.raw("  .amdhsa_accum_offset 160")
    A.raw("  .amdhsa_group_segment_fixed_size 0"); A.raw("  .amdhsa_kernarg_size 96"); A.raw("  .amdhsa_user_sgpr_count 2")
    A.raw("  .amdhsa_user_sgpr_kernarg_segment_ptr 1"); A.raw("  .amdhsa_system_sgpr_workgroup_id_x 1"); A.raw(".end_amdhsa_kernel")
    return A.text()

if __name__ == "__main__":
    out = sys.argv[1] if len(sys.argv) > 1 else f"cdna_kernels/{NAME}.s"
    kw = {}
    for a in sys.argv[2:]:
        k, v = a.split("=")
        try: v = int(v, 0)
        except ValueError: pass
        kw[k] = v
    open(out, "w").write(gen(**kw))
```

```python
import sys, struct, math
sys.path.insert(0, "work")
from asmlib import Asm

NAME = "recurrent_scan__sliding_block_cached__swiglu_ffn__decode"

def f2u(x): return struct.unpack("<I", struct.pack("<f", x))[0]

WS_E    = 0x0
WS_G    = 0x1000
WS_RB   = 0x3000
WS_SBOX = 0x4000
WS_HBOX = 0x8000
WS_OBOX = 0x80000
WS_QBOX = 0x100000
WS_FIN  = 0x140000
WS_ACC  = 0x10000
WS_STAMP = 0x400000
L_XN, XNP = 0x0, 320
L_FLAG = 0xA00
FL_Q, FL_ST, FL_MODE, FL_F, FL_H, FL_O, FL_WO, FL_OB, FL_WQ, FL_GU, FL_SP, FL_OP, FL_D, FL_VP, FL_M, FL_RANK = 0, 4, 8, 12, 16, 20, 24, 28, 32, 36, 40, 44, 48, 52, 56, 60
L_ST = 0xB00
L_F  = 0xC00
L_QF = 0xD00
L_OB, OBP = 0x1100, 320
L_GX = 0x1600
L_HB = 0x1800
L_WQ = 0x2000
L_GA = 0x6000
L_UP = 0x8000
L_DN = 0xA000
L_WO = 0xC000
L_ORED, ORP = 0x10000, 2080
L_TOTAL = 0x14400
NH = 4
NW = 12

DPP = "row_mask:0xf bank_mask:0xf"

HEADER = """
;
"""

def gen(stamps=False, cap=3, wflags="nt", kvflags="nt", nv_early=3, nv_mid=1, spin=1 << 22, gfirst=False, dsplit=False, spread=0, boost=((7, 24),), ms=(-2,), rds=(7,), lead=(16, 18, 24), xl=None, wb2=0, bcap=4, kvprio=0, hprio=3, tprio=None,
        psleep=0, hsleep=4, osleep=0, cap2=None, pflags='sc1', xtries=24, qdelay=48, s_at=15, palign=0, cpre=False, capo=None, c2from=24, xdelay=0, f_at='o0', d_at=9, hgdelay=4, gdelay=20, gtrig='o', fdelay=16, stdelay=8, early=False, cap0=None, alt=0, force_slow=False,
        padto=0, xpoll='v', vp_at=10, fin_at="o", touch=False, orsleep=0, gate=True, sdelay=4, ppre='sf', pst='', pat=7, dbg=0, owarm=False, fsleep=1, hint=True, hdelay=0, hidx=31, hwarm=True, hmode='lds', hown=True, ormode=0, orslack=0, wb=0, wbmid=0):
    A = Asm()
    for l in HEADER.strip("\n").split("\n"): A.raw(l)
    A.raw(f"; @launch grid=(256,1,1) block=({64*NW},1,1) lds={L_TOTAL}")
    A.raw('.amdgcn_target "amdgcn-amd-amdhsa--gfx950"')
    A.raw(".text"); A.raw(f".globl {NAME}_kernel")
    if palign is not None:
        A.raw(".p2align 12")
        pad = (palign - 0x300) % 4096
        if pad: A.raw(f".fill {pad // 4}, 4, 0xbf800000   ; never executed: puts the entry at the start of a 4 KiB page (instruction prefetch stops at page ends)")
    A.raw(".p2align 8"); A.raw(f".type {NAME}_kernel,@function")
    A.label(f"{NAME}_kernel")
    def stamp(k):
        if stamps == 1 or (stamps >= 2 and k in (0, 9, 10)):
            assert k < 11
            A(f"s_memrealtime s[{80+2*k}:{81+2*k}]")
    def dump_stamps():
        if not stamps: return
        if stamps == 2:
            A(f"s_cmp_gt_u32 s3, {NH}"); A("s_cbranch_scc1 L_end")
        A("s_sleep 120")
        A("s_waitcnt lgkmcnt(0)")
        A("s_mov_b64 exec, 1")
        A(f"s_mul_i32 s72, s2, {NW}"); A("s_add_u32 s72, s72, s3"); A("s_lshl_b32 s72, s72, 6"); A(f"s_add_u32 s72, s72, {WS_STAMP}")
        A("v_mov_b32 v7, s72")
        for k in (range(11) if stamps == 1 else (0, 9, 10)):
            A(f"v_mov_b32 v6, s{80+2*k}")
            A(f"global_store_dword v7, v6, s[26:27] offset:{4*k}")
    T0, T1, T2, T3 = "s48", "s49", "s50", "s51"
    TAU = [T0, T1, T2, T3]
    def tags_from_epoch(inc=1):
        A(f"s_add_u32 s52, s52, {inc}")
        A("s_and_b32 s48, s52, 0xff")
        A("s_xor_b32 s49, s48, 0x55"); A("s_xor_b32 s50, s48, 0xaa"); A("s_xor_b32 s51, s48, 0xff")
    uid = [0]
    def nid():
        uid[0] += 1; return uid[0]
    def guard():
        A("s_add_u32 s53, s53, 1")
        A(f"s_cmp_gt_u32 s53, {spin}")
        A("s_cbranch_scc1 L_end")
    def poll(loads, acc, acc2, sleep, gate=None, first_mask=None):
        n = nid()
        if sleep or gate:
            A(f"s_branch L_poll{n}")
            A.label(f"L_pollr{n}")
            if sleep: A(f"s_sleep {sleep}")
            if gate: gate()
            A.label(f"L_poll{n}")
        else:
            A.label(f"L_pollr{n}")
        for q, (d, va, off) in enumerate(loads):
            if first_mask is not None and q == 0:
                A("s_mov_b32 s72, exec_hi"); A(f"s_and_b32 exec_hi, exec_hi, {hex(first_mask)}")
            A(f"global_load_dwordx4 v[{d}:{d+3}], v{va}, s[26:27] offset:{off} {pflags}")
            if first_mask is not None and q == 0:
                A("s_mov_b32 exec_hi, s72")
        guard()
        for q, (d, va, off) in enumerate(loads):
            A(f"s_waitcnt vmcnt({len(loads)-1-q})")
            if q == 0:
                A(f"v_xor_b32 v{acc}, {T0}, v{d}")
                A(f"v_xor_b32 v{acc2}, {T1}, v{d+1}")
            else:
                A(f"v_bitop3_b32 v{acc}, v{acc}, v{d}, {T0} bitop3:0xf6")
                A(f"v_bitop3_b32 v{acc2}, v{acc2}, v{d+1}, {T1} bitop3:0xf6")
            A(f"v_bitop3_b32 v{acc}, v{acc}, v{d+2}, {T2} bitop3:0xf6")
            A(f"v_bitop3_b32 v{acc2}, v{acc2}, v{d+3}, {T3} bitop3:0xf6")
        A(f"v_bitop3_b32 v{acc}, v{acc}, v{acc2}, v2 bitop3:0x54")
        A(f"v_cmp_ne_u32 vcc, 0, v{acc}")
        A("s_and_b64 exec, exec, vcc")
        A(f"s_cbranch_scc1 L_pollr{n}")
        A("s_mov_b64 exec, -1")
    def publish(stores):
        n = nid()
        A("s_cmp_eq_u32 s78, 1")
        A(f"s_cbranch_scc0 L_ps{n}")
        for va, d, off in stores: A(f"global_store_dwordx4 v{va}, v[{d}:{d+3}], s[26:27] offset:{off}")
        A.label(f"L_pd{n}")
        slow.append((n, stores))
    slow = []
    def ldswait(off, val, vt, sleep=1, ge=False):
        n = nid()
        if sleep:
            A(f"s_branch L_lw{n}")
            A.label(f"L_lwr{n}")
            A(f"s_sleep {sleep}")
            A.label(f"L_lw{n}")
        else:
            A.label(f"L_lwr{n}")
        A(f"ds_read_b32 v{vt}, v1 offset:{off}")
        guard()
        A("s_waitcnt lgkmcnt(0)")
        if ge: A(f"v_cmp_gt_u32 vcc, {val}, v{vt}")
        else: A(f"v_cmp_ne_u32 vcc, {val}, v{vt}" if val else f"v_cmp_eq_u32 vcc, 0, v{vt}")
        A(f"s_cbranch_vccnz L_lwr{n}")
    def ldsinc(off, vt):
        A(f"v_mov_b32 v{vt}, 1")
        A("s_mov_b64 exec, 1")
        A(f"ds_add_u32 v1, v{vt} offset:{off}")
        A("s_mov_b64 exec, -1")
    def getmode(vt):
        ldswait(FL_MODE, None, vt)
        A(f"v_readfirstlane_b32 s78, v{vt}")
    def srd(s, lo, size):
        A(f"s_mov_b32 s{s}, s{lo}"); A(f"s_mov_b32 s{s+1}, s{lo+1}")
        A(f"s_mov_b32 s{s+2}, {size}"); A(f"s_mov_b32 s{s+3}, 0x20000")
    def allred8(op, v):
        A(f"{op}_dpp v{v}, v{v}, v{v} quad_perm:[1,0,3,2] {DPP}")
        A(f"{op}_dpp v{v}, v{v}, v{v} quad_perm:[2,3,0,1] {DPP}")
        A(f"{op}_dpp v{v}, v{v}, v{v} row_half_mirror {DPP}")
    def allred_rows(op, v, t):
        A(f"v_mov_b32 v{t}, v{v}"); A(f"v_permlane16_swap_b32 v{v}, v{t}"); A(f"{op} v{v}, v{v}, v{t}")
        A(f"v_mov_b32 v{t}, v{v}"); A(f"v_permlane32_swap_b32 v{v}, v{t}"); A(f"{op} v{v}, v{v}, v{t}")
    def reduce32(L):
        for a in L: A(f"v_permlane32_swap_b32 v{a}, v{a+2}"); A(f"v_permlane32_swap_b32 v{a+1}, v{a+3}")
        for a in L: A(f"v_pk_add_f32 v[{a}:{a+1}], v[{a}:{a+1}], v[{a+2}:{a+3}]")
        for a in L: A(f"v_permlane16_swap_b32 v{a}, v{a+1}")
        for a in L: A(f"v_add_f32 v{a}, v{a}, v{a+1}")
        for r in (8, 4, 2):
            for a in L: A(f"v_add_f32_dpp v{a}, v{a}, v{a} row_ror:{r} {DPP}")
    def reduce_f(L):
        for a in L:
            for k in range(2): A(f"v_pk_add_f32 v[{a+2*k}:{a+2*k+1}], v[{a+2*k}:{a+2*k+1}], v[{a+4+2*k}:{a+4+2*k+1}]")
            for k in range(2): A(f"v_pk_add_f32 v[{a+8+2*k}:{a+8+2*k+1}], v[{a+8+2*k}:{a+8+2*k+1}], v[{a+12+2*k}:{a+12+2*k+1}]")
        for a in L:
            for k in range(2): A(f"v_pk_add_f32 v[{a+2*k}:{a+2*k+1}], v[{a+2*k}:{a+2*k+1}], v[{a+8+2*k}:{a+8+2*k+1}]")
        for a in L: A(f"v_permlane32_swap_b32 v{a}, v{a+2}"); A(f"v_permlane32_swap_b32 v{a+1}, v{a+3}")
        for a in L: A(f"v_pk_add_f32 v[{a}:{a+1}], v[{a}:{a+1}], v[{a+2}:{a+3}]")
        for a in L: A(f"v_permlane16_swap_b32 v{a}, v{a+1}")
        for a in L: A(f"v_add_f32 v{a}, v{a}, v{a+1}")
        for a in L: A(f"v_add_f32_dpp v{a}, v{a}, v{a} row_ror:8 {DPP}")
    def dma(vaddr, srdn, sbase, step, n, ldsbase, flags):
        for t in range(n):
            A(f"s_add_u32 s72, s{sbase}, {t*step}")
            A(f"s_mov_b32 m0, {ldsbase + t*1024}")
            A(f"buffer_load_dwordx4 v{vaddr}, s[{srdn}:{srdn+3}], s72 offen {flags} lds")
    def silu(dst, src, n):
        for r in range(n): A(f"v_mul_f32 v{dst+r}, {hex(NLOG2E)}, v{src+r}")
        for r in range(n): A(f"v_exp_f32 v{dst+r}, v{dst+r}")
        for r in range(n): A(f"v_add_f32 v{dst+r}, 1.0, v{dst+r}")
        for r in range(n): A(f"v_rcp_f32 v{dst+r}, v{dst+r}")
        for r in range(n): A(f"v_mul_f32 v{dst+r}, v{dst+r}, v{src+r}")
        for r in range(n): A(f"v_cvt_pk_bf16_f32 v{dst+r}, 0, v{dst+r}")
    def tile_reads(base, nks, dst):
        for nt in range(4):
            for s in range(nks):
                for t2 in range(2):
                    q = dst + 4*(nt*nks + s) + 2*t2
                    A(f"ds_read_b64_tr_b16 v[{q}:{q+1}], v15 offset:{base + s*4096 + t2*512 + nt*32}")
    def tile_mfma(acc, nks, wf, xf):
        for s in range(nks):
            for nt in range(4):
                q = wf + 4*(nt*nks + s)
                A(f"v_mfma_f32_16x16x32_bf16 v[{acc+4*nt}:{acc+4*nt+3}], v[{q}:{q+3}], v[{xf+4*s}:{xf+4*s+3}], " + ("0" if s == 0 else f"v[{acc+4*nt}:{acc+4*nt+3}]"))
    def ex16():
        A("s_mov_b32 exec_lo, 0x000f000f"); A("s_mov_b32 exec_hi, 0x000f000f")
    CSC = f2u(math.log2(math.e))
    QSC = f2u(128.0 ** -0.5)
    NLOG2E = f2u(-math.log2(math.e))

    A.c("================= common prologue =================")
    stamp(0)
    if padto: A("s_memrealtime s[96:97]")
    A("s_load_dwordx16 s[4:19], s[0:1], 0")
    A("s_load_dwordx8 s[20:27], s[0:1], 64")
    A("v_lshrrev_b32 v1, 6, v0")
    A("s_cmp_ge_u32 s2, 256")
    A("s_cbranch_scc1 L_end")
    A("v_readfirstlane_b32 s3, v1")
    A("v_and_b32 v0, 63, v0")
    A("s_and_b32 s28, s2, 7 ; hkv")
    A("s_lshr_b32 s29, s2, 3 ; idx")
    A("s_lshr_b32 s30, s2, 6 ; b")
    A("s_and_b32 s31, s29, 7 ; j")
    A("s_lshr_b32 s76, s29, 2")
    A("s_and_b32 s75, s2, 31")
    A("v_lshrrev_b32 v9, 3, v0"); A("v_and_b32 v8, 7, v0"); A("v_lshlrev_b32 v8, 4, v8 ; l>>3 ; (l&7)*16")
    A(f"s_sub_u32 s54, s3, {NH}")
    A("s_cbranch_scc1 L_help")
    def common():
        A("s_lshl_b32 s77, s28, 2"); A("s_add_u32 s77, s77, s30")
        A("s_mov_b32 s53, 0")
        A(f"v_mov_b32 v1, {L_FLAG}")
        A("v_mov_b32 v2, 0xffffff00")
        A("v_lshrrev_b32 v3, 4, v0 ; g = lane>>4")
        A("v_and_b32 v11, 3, v0 ; c / b")
        A("v_bfe_u32 v10, v0, 2, 2 ; (lane>>2)&3")

    A.c("================= K/V waves =================")
    KR, VR = 32, 96
    DT = 16
    QF = 12
    A.c("weight tiles ([row][128 B], 8 rows per instruction) ride in the same throttled stream")
    A("v_lshl_add_u32 v6, v9, 13, v8")
    A("s_lshl_b32 s56, s30, 4"); A("s_add_u32 s56, s56, s54"); A("s_lshl_b32 s56, s56, 6"); A("s_add_u32 s56, s56, s28")
    A("s_lshl_b32 s56, s56, 3"); A("s_add_u32 s56, s56, s31"); A("s_lshl_b32 s56, s56, 7")
    A("s_lshl_b32 s73, s54, 10")
    A("s_mov_b32 s46, 0x400000"); A("s_mov_b32 s47, 0x20000")
    A(f"s_add_u32 m0, s73, {L_GA if gfirst else L_WQ}")
    A("s_add_u32 s57, s56, 0x80000")
    A("v_mul_u32_u24 v7, 3584, v9"); A("v_add_u32 v7, v7, v8")
    A("s_lshl_b32 s72, s76, 3"); A("s_add_u32 s72, s72, s54"); A(f"s_mul_i32 s58, s72, {8*3584}"); A("s_lshl_b32 s72, s75, 7"); A("s_add_u32 s58, s58, s72")
    A("s_cmp_lt_u32 s75, 28")
    A("s_cselect_b32 s42, 0x1c0000, 0")
    A("s_mov_b32 s43, s47")
    A("s_waitcnt lgkmcnt(0)")
    stamp(1)
    A("s_mov_b64 s[44:45], s[10:11]")
    issued = []
    def ldK(i):
        A(f"buffer_load_dwordx4 v[{KR+4*i}:{KR+4*i+3}], v4, s[32:35], s{56+i} offen {kvflags}"); issued.append(("K", i))
    def ldV(i):
        A(f"buffer_load_dwordx4 v[{VR+4*i}:{VR+4*i+3}], v5, s[36:39], s{56+i} offen {kvflags}"); issued.append(("V", i))
    def ldW(tag, va, sr, so, lds):
        if lds is not None: A(f"s_add_u32 m0, s73, {lds}")
        A(f"buffer_load_dwordx4 v{va}, s[{sr}:{sr+3}], s{so} offen {wflags} lds"); issued.append(tag)
    def waitfor(tag):
        n = len(issued) - 1 - issued.index(tag)
        A(f"s_waitcnt vmcnt({n})")
    if gfirst:
        A("s_mov_b64 s[40:41], s[16:17]")
        ldW("g", 7, 40, 58, None)
        A("s_mov_b64 s[36:37], s[18:19]"); A("s_mov_b32 s38, s42"); A("s_mov_b32 s39, 0x20000")
        ldW("u", 7, 36, 58, L_UP)
        ldW("q0", 6, 44, 56, L_WQ)
        A("v_mov_b32 v7, v6")
    else:
        ldW("q0", 6, 44, 56, None)
        A("s_mov_b64 s[40:41], s[16:17]")
        if spread == "b": A("s_barrier")
        elif spread: A(f"s_sleep {spread}")
        ldW("q1", 6, 44, 57, L_WQ + 8192)
        if spread == "b": A("s_barrier")
        elif spread: A(f"s_sleep {spread}")
        ldW("g", 7, 40, 58, L_GA)
        A("s_mov_b64 s[36:37], s[18:19]"); A("s_mov_b32 s38, s42"); A("s_mov_b32 s39, 0x20000")
    A("s_load_dword s52, s[26:27], 0")
    common()
    A("v_lshlrev_b32 v4, 4, v11"); A("v_lshl_add_u32 v4, v10, 8, v4"); A("v_lshl_add_u32 v4, v3, 6, v4 ; K voffset")
    A("v_lshlrev_b32 v5, 4, v0 ; V voffset")
    A("s_lshl_b32 s55, s30, 3"); A("s_add_u32 s55, s55, s28"); A("s_lshl_b32 s55, s55, 22")
    A("s_lshl_b32 s72, s31, 17"); A("s_add_u32 s55, s55, s72"); A("s_add_u32 s55, s55, 0x300000")
    A("s_add_u32 s72, s31, s28"); A("s_lshl_b32 s72, s72, 12"); A("s_add_u32 s74, s73, s72")
    A("s_lshl_b32 s72, s30, 15"); A("s_add_u32 s74, s74, s72")
    A("s_add_u32 s32, s6, s55"); A("s_addc_u32 s33, s7, 0"); A("s_mov_b32 s34, 0x20000"); A("s_mov_b32 s35, 0x20000")
    A("s_mov_b32 s75, 0x1ffff")
    def koff(i):
        if i == 0: A("s_and_b32 s56, s74, s75")
        else: A(f"s_add_u32 s{56+i}, s{55+i}, 0x2000"); A(f"s_and_b32 s{56+i}, s{56+i}, s75")
    A("s_barrier ; 0")
    A.c("wo / w_down voffset: (l>>3)*1024 + (((l&7) ^ (f<<1))*16), f = ((l>>4)&1) | ((u&1)<<1)   (bank swizzle for the tr reads)")
    A("s_and_b32 s72, s54, 1"); A("s_lshl_b32 s72, s72, 6")
    A("v_and_b32 v6, 1, v3"); A("v_lshlrev_b32 v6, 5, v6"); A("v_or_b32 v6, s72, v6"); A("v_xor_b32 v6, v6, v8")
    A("v_lshl_add_u32 v6, v9, 10, v6")
    A(f"s_waitcnt vmcnt({cap-1})")
    if gfirst: ldW("q1", 7, 44, 57, L_WQ + 8192)
    else: ldW("u", 7, 36, 58, L_UP)
    A("s_add_u32 s36, s8, s55"); A("s_addc_u32 s37, s9, 0"); A("s_mov_b32 s38, 0x20000 ; V")
    A("s_cmp_lt_u32 s29, 28"); A("s_cselect_b32 s46, 0x1c0000, 0"); A("s_mov_b64 s[44:45], s[20:21] ; w_down")
    if dsplit:
        A.c("waves 0..3 run half a load period ahead of waves 4..7: they take both w_down pieces (u, u+4); the others' are empty")
        A("s_cmp_lt_u32 s54, 4"); A("s_cselect_b32 s46, s46, 0"); A(f"s_cselect_b32 s76, s73, {L_TOTAL - 1024 - L_DN}")
    A("s_mov_b64 s[40:41], s[12:13]"); A("s_mov_b32 s42, 0x400000 ; wo")
    A("v_lshl_add_u32 v12, v9, 10, v8")
    A("s_lshl_b32 s78, s29, 3"); A("s_add_u32 s78, s78, s54"); A("s_lshl_b32 s78, s78, 6"); A("s_add_u32 s78, s78, s28"); A("s_lshl_b32 s78, s78, 7")
    A.c("PV masks")
    A("v_and_b32 v7, 1, v0"); A("v_lshlrev_b32 v7, 4, v7"); A("v_mov_b32 v8, 0xffff"); A("v_lshlrev_b32 v7, v7, v8")
    A("v_cmp_gt_u32 vcc, 2, v11")
    A("v_cndmask_b32 v8, 0, v7, vcc ; mask0")
    A("v_cndmask_b32 v9, v7, 0, vcc ; mask1")
    A(f"s_mov_b32 s79, {hex(CSC)}")
    Z = lambda i: KR + 4*i
    O0, O1 = 16, 20
    def c_q():
        A("s_waitcnt lgkmcnt(0)")
        tags_from_epoch(2)
        stamp(2)
        ldswait(FL_Q, None, 7)
        A("v_readfirstlane_b32 s78, v7")
        A(f"ds_read_b128 v[{QF}:{QF+3}], v5 offset:{L_QF}")
        A("s_waitcnt lgkmcnt(0)")
        stamp(3)
    def c_s(gq):
        for t in range(4):
            i = 4*gq + t
            A(f"v_mfma_f32_16x16x32_bf16 v[{DT+4*t}:{DT+4*t+3}], v[{KR+4*i}:{KR+4*i+3}], v[{QF}:{QF+3}], 0")
        for c in range(4):
            for t in range(4):
                z = Z(4*gq + t)
                if c == 0: A(f"v_mov_b32_dpp v{z}, v{DT+4*t} quad_perm:[0,0,0,0] {DPP}")
                else: A(f"v_add_f32_dpp v{z}, v{DT+4*t+c}, v{z} quad_perm:[{c},{c},{c},{c}] {DPP}")
        A.c("scores are bf16 in the reference, before and after the 1/sqrt(d) scale")
        for t in range(4): A(f"v_cvt_pk_bf16_f32 v{Z(4*gq+t)}, 0, v{Z(4*gq+t)}")
        for t in range(4): A(f"v_mul_f32 v{Z(4*gq+t)}, {hex(QSC)}, v{Z(4*gq+t)}")
        for t in range(4): A(f"v_cvt_pk_bf16_f32 v{Z(4*gq+t)}, 0, v{Z(4*gq+t)}")
    def c_max():
        A(f"v_max3_f32 v16, v{Z(0)}, v{Z(1)}, v{Z(2)}"); A(f"v_max3_f32 v17, v{Z(3)}, v{Z(4)}, v{Z(5)}")
        A(f"v_max3_f32 v18, v{Z(6)}, v{Z(7)}, v{Z(8)}"); A(f"v_max3_f32 v19, v{Z(9)}, v{Z(10)}, v{Z(11)}")
        A(f"v_max3_f32 v16, v16, v{Z(12)}, v{Z(13)}"); A(f"v_max3_f32 v17, v17, v{Z(14)}, v{Z(15)}")
        A("v_max3_f32 v16, v16, v17, v18"); A("v_max_f32 v16, v16, v19")
        allred_rows("v_max_f32", 16, 18)
        A("v_mul_f32 v18, s79, v16")
        for i in range(16): A(f"v_fma_f32 v{Z(i)}, v{Z(i)}, s79, -v18")
    def c_exp():
        for i in range(16): A(f"v_exp_f32 v{Z(i)}, v{Z(i)}")
        for k in range(4): A(f"v_add_f32 v{20+k}, v{Z(k)}, v{Z(k+4)}")
        for k in range(4): A(f"v_add_f32 v{20+k}, v{20+k}, v{Z(k+8)}")
        for k in range(4): A(f"v_add_f32 v{20+k}, v{20+k}, v{Z(k+12)}")
        A("v_add_f32 v20, v20, v21"); A("v_add_f32 v22, v22, v23"); A("v_add_f32 v17, v20, v22")
        allred_rows("v_add_f32", 17, 18)
        A("s_lshl_b32 s72, s54, 3")
        A("v_lshl_add_u32 v7, v10, 6, s72")
        A(f"ds_write_b64 v7, v[16:17] offset:{L_ST}")
        ldsinc(FL_ST, 7)
    def c_p():
        for i in range(16): A(f"v_cvt_pk_bf16_f32 v{Z(i)+1}, v{Z(i)}, v{Z(i)}")
        for i in range(16):
            A(f"v_and_b32 v{Z(i)+2}, v{Z(i)+1}, v8"); A(f"v_and_b32 v{Z(i)+3}, v{Z(i)+1}, v9")
        stamp(4)
    def c_pv(i):
        A(f"v_mfma_f32_16x16x16_bf16 v[{O0}:{O0+3}], v[{Z(i)+2}:{Z(i)+3}], v[{VR+4*i}:{VR+4*i+1}], " + ("0" if i == 0 else f"v[{O0}:{O0+3}]"))
        A(f"v_mfma_f32_16x16x16_bf16 v[{O1}:{O1+3}], v[{Z(i)+2}:{Z(i)+3}], v[{VR+4*i+2}:{VR+4*i+3}], " + ("0" if i == 0 else f"v[{O1}:{O1+3}]"))
    def c_setup():
        A("s_lshl_b32 s72, s54, 13")
        A("s_lshl_b32 s57, s77, 17"); A("s_add_u32 s57, s57, s72"); A("s_lshl_b32 s74, s31, 7"); A("s_add_u32 s57, s57, s74")
        A("s_add_u32 s58, s57, 0x10000")
        A(f"s_mul_i32 s72, s54, {ORP}"); A(f"s_add_u32 s72, s72, {L_ORED}"); A("v_add_u32 v24, s72, v5")
        A(f"v_mul_u32_u24 v25, {2*ORP}, v11")
        A("v_bfe_u32 v7, v0, 2, 1"); A("v_lshl_add_u32 v25, v7, 10, v25")
        A("v_lshrrev_b32 v7, 3, v0"); A("v_lshl_add_u32 v25, v7, 4, v25")
        A("s_lshl_b32 s72, s54, 7"); A(f"s_add_u32 s72, s72, {L_ORED}"); A("v_add_u32 v25, s72, v25")
        A("s_lshl_b32 s72, s54, 4"); A("v_lshl_add_u32 v26, v3, 2, s72 ; F address: u*16 + g*4")
        A("s_lshl_b32 s72, s77, 3"); A("s_add_u32 s72, s72, s31"); A("s_lshl_b32 s72, s72, 11")
        A("s_lshl_b32 s74, s54, 8"); A("s_add_u32 s72, s72, s74"); A(f"s_add_u32 s72, s72, {WS_OBOX}")
        A("v_lshrrev_b32 v7, 2, v0"); A("v_lshl_add_u32 v27, v7, 4, s72")
        A("v_mov_b32 v28, 1")
        if gtrig == "vp": A("s_mov_b64 exec, 1"); A(f"ds_add_u32 v1, v28 offset:{FL_VP}"); A("s_mov_b64 exec, -1")
    def c_f():
        A.c("softmax factor of this wave for head g (ready long before the last V tile lands)")
        if kvprio: A(f"s_setprio {kvprio}")
        ldswait(FL_F, 3, 7)
        A(f"ds_read_b32 v12, v26 offset:{L_F}")
    A.c("one throttled stream of loads; one chunk of compute behind each issue, as soon as its operands have landed")
    seq = [("K", i) for i in range(d_at)] + (["e", "d"] if dsplit else ["d"]) + [("K", i) for i in range(d_at, 16)] + [("V", i) for i in range(16)] + ["o0", "o1"]
    chunks = [(("K", 3), lambda: (c_q(), c_s(0))), (("K", 7), lambda: c_s(1)), (("K", 11), lambda: c_s(2)), (("K", 15), lambda: c_s(3)),
              (("K", 15), c_max), (("K", 15), c_exp), (("K", 15), c_p)]
    told = set()
    nv0 = seq.index(("V", 0))
    if boost: A("s_mov_b32 s76, 0")
    st = dict(npv=0)
    def issue(tag):
        if tag[0] == "K": ldK(tag[1])
        elif tag[0] == "V": ldV(tag[1])
        elif tag == "d": ldW("d", 12, 44, 78, L_DN)
        elif tag == "o0": ldW("o0", 6, 40, 57, L_WO)
        else: ldW("o1", 6, 40, 58, L_WO + 8192)
    def pv_upto(done):
        while st["npv"] < 16 and ("V", st["npv"]) in done:
            c_pv(st["npv"]); st["npv"] += 1
    def step(n_, tag, c, thr=None):
        if tag[0] == "K": koff(tag[1])
        if thr is not None:
            A.c("a workgroup that is among the last of its group at the milestone keeps a wider window of loads")
            A(f"s_cmp_ge_u32 s76, {thr}"); A(f"s_cbranch_scc1 L_bs{n_}")
            inl = lead and lead[0] <= n_ - nv0 < lead[1]
            lw = ((lead[3][n_ - nv0 - lead[0]] if len(lead) > 3 else c - 1) - 1) if inl else None
            if inl and lead[2] == thr:
                A(f"s_waitcnt vmcnt({lw})")
            else:
                A(f"s_waitcnt vmcnt({c-1})")
                if inl:
                    A(f"s_cmp_ge_u32 s76, {lead[2]}"); A(f"s_cbranch_scc1 L_bs{n_}")
                    A(f"s_waitcnt vmcnt({lw})")
            A.label(f"L_bs{n_}")
            c = bcap
        A(f"s_waitcnt vmcnt({c-1})")
        done = issued[:max(0, len(issued) - (c - 1))]
        if tag in ("o0", "o1"): pv_upto(done)
        issue(tag)
        for t_, fl in (("q1", FL_WQ), ("u", FL_GU), ("d", FL_D)):
            if t_ in done and t_ not in told:
                told.add(t_); ldsinc(fl, 7)
        if boost and n_ in [nv0 + m for m in ms]: ldsinc(FL_M, 7)
        if chunks:
            if n_ > s_at and chunks[0][0] in done: chunks.pop(0)[1]()
        else:
            pv_upto(done)
            if tag == f_at: c_f()
    def finish():
        while st["npv"] < 16:
            waitfor(("V", st["npv"])); c_pv(st["npv"]); st["npv"] += 1
    thr = None
    for n_, tag in enumerate(seq):
        for (e, t_) in (boost or ()):
            if n_ == nv0 + e: thr = t_
        rd = boost and (n_ + 1 - nv0) in rds
        if rd: A(f"ds_read_b32 v30, v1 offset:{FL_RANK}"); A("s_waitcnt lgkmcnt(0)"); A("v_readfirstlane_b32 s76, v30")
        step(n_, tag, cap, thr)
        if tag == ("V", vp_at): c_setup()
    finish()
    A("s_waitcnt lgkmcnt(0)")
    stamp(5)
    for k in range(4): A(f"v_pk_mul_f32 v[{16+2*k}:{17+2*k}], v[{16+2*k}:{17+2*k}], v[12:13] op_sel_hi:[1,0]")
    A("ds_write_b128 v24, v[16:19]")
    A("ds_write_b128 v24, v[20:23] offset:1024")
    A("s_mov_b64 exec, 1")
    A(f"ds_add_u32 v1, v28 offset:{FL_O}")
    A("s_mov_b64 exec, -1")
    A.label("L_orr")
    A(f"ds_read_b32 v7, v1 offset:{FL_O}")
    A("ds_read_b128 v[32:35], v25")
    A(f"ds_read_b128 v[36:39], v25 offset:{ORP}")
    guard()
    A("s_waitcnt lgkmcnt(2)")
    A("v_cmp_ne_u32 vcc, 8, v7")
    A("s_cbranch_vccnz " + ("L_orw" if ormode else "L_orr"))
    A("s_waitcnt lgkmcnt(0)")
    for k in range(2): A(f"v_pk_add_f32 v[{32+2*k}:{33+2*k}], v[{32+2*k}:{33+2*k}], v[{36+2*k}:{37+2*k}]")
    for qp in ("[1,0,3,2]", "[2,3,0,1]"):
        for k in range(4): A(f"v_add_f32_dpp v{32+k}, v{32+k}, v{32+k} quad_perm:{qp} {DPP}")
    A("s_mov_b32 exec_lo, 0x11111111"); A("s_mov_b32 exec_hi, 0x11111111")
    for k in range(4): A(f"v_and_or_b32 v{32+k}, v{32+k}, v2, {TAU[k]}")
    publish([(27, 32, 0)])
    A("s_mov_b64 exec, 1")
    A(f"ds_add_u32 v1, v28 offset:{FL_OP}")
    stamp(6)
    A("s_waitcnt vmcnt(1)")
    A(f"ds_add_u32 v1, v28 offset:{FL_WO}")
    stamp(9)
    A.label("L_kvdone")
    if stamps:
        A("s_waitcnt vmcnt(0)")
        stamp(10)
    dump_stamps()
    A("s_endpgm")
    if ormode:
        A.label("L_orw"); A.reset()
        if ormode == 1:
            A(f"ds_read_b32 v7, v1 offset:{FL_O}")
            guard()
            A("s_waitcnt lgkmcnt(0)")
            A(f"v_cmp_gt_u32 vcc, {8 - orslack}, v7")
            A("s_cbranch_vccnz L_orw")
        elif ormode == 2: A("s_waitcnt lgkmcnt(0)")
        elif ormode == 3: A("s_sleep 1")
        A("s_branch L_orr")

    A.c("================= helper waves =================")
    A.raw(".p2align 12" if (palign is not None and not stamps) else ".p2align 6")
    A.label("L_help"); A.reset()
    if xl: A("s_memrealtime s[56:57]")
    A(f"s_setprio {hprio}")
    A.c("x offsets: g*1024 + i*16 + ((t+kq4)&3)*256   (kq4 = b = s30)")
    A("v_lshrrev_b32 v3, 4, v0"); A("v_and_b32 v4, 15, v0 ; g, i")
    A("v_lshlrev_b32 v5, 4, v4"); A("s_lshl_b32 s72, s30, 8"); A("v_add_u32 v32, s72, v5")
    for t in range(1, 4): A(f"v_add_u32 v{32+t}, {256*t}, v32")
    for t in range(1, 4): A(f"v_and_b32 v{32+t}, 0x3ff, v{32+t}")
    for t in range(4): A(f"v_lshl_add_u32 v{32+t}, v3, 10, v{32+t}")
    A("s_getreg_b32 s66, hwreg(HW_REG_XCC_ID)")
    A("s_and_b32 s66, s66, 15"); A("s_add_u32 s66, s66, 1")
    A("s_lshl_b32 s62, s28, 5"); A("s_add_u32 s72, s62, s29")
    A("v_mov_b32 v12, s72"); A("v_mov_b32 v14, s66")
    XR = 16
    A("s_cmp_lt_u32 s3, 2")
    A("s_waitcnt lgkmcnt(0)")
    stamp(1)
    if spread == "b": A("s_barrier"); A("s_barrier")
    A("s_cbranch_scc0 L_nx")
    for t in range(4):
        A(f"global_load_dwordx4 v[{XR+4*t}:{XR+4*t+3}], v{32+t}, s[4:5]")
    A("s_branch L_nox")
    A.label("L_nx")
    if cpre:
        A.c("pull this kernel's code into L2 (512 B per wave) so that later instruction fetches do not go to memory")
        A("s_getpc_b64 s[68:69]")
        A.label("L_pc")
        A(f"s_sub_u32 s68, s68, L_pc-{NAME}_kernel"); A("s_subb_u32 s69, s69, 0")
        A("s_lshl_b32 s72, s29, 1"); A("s_add_u32 s72, s72, s3"); A("s_sub_u32 s72, s72, 2"); A("s_lshl_b32 s72, s72, 8")
        A(f"s_min_u32 s72, s72, (L_last-{NAME}_kernel-256)&0xffffff00")
        A("v_lshl_add_u32 v44, v0, 2, s72")
        A("global_load_dword v45, v44, s[68:69]")
    A("s_mov_b64 exec, 1")
    A("global_store_byte v12, v14, s[24:25]")
    A("s_mov_b64 exec, -1")
    A.label("L_nox")
    common()
    for k in range(4): A(f"v_mov_b32 v{40+k}, 0")
    for k in range(4): A(f"ds_write_b128 v1, v[40:43] offset:{16*k}")
    A("s_mov_b32 s55, s76"); A("s_mov_b32 s54, s75")
    A.c("tr-read lane base for [row][128B] tiles: (8g + (i>>2))*128 + c*8")
    A("v_lshl_add_u32 v15, v3, 3, v10"); A("v_lshlrev_b32 v15, 7, v15"); A("v_lshl_add_u32 v15, v11, 3, v15")
    A("s_mul_i32 s66, s66, 0x01010101"); A("v_lshl_add_u32 v13, v0, 2, s62")
    A("s_waitcnt lgkmcnt(0)")
    A("s_load_dword s52, s[26:27], 0")
    A("s_barrier")
    A("s_cmp_lt_u32 s3, 2")
    A("s_cbranch_scc1 L_h01")
    A.c("---- waves 2/3: LDS init, XCC handshake, page touches, wo tile ----")
    A("s_waitcnt lgkmcnt(0)")
    tags_from_epoch()
    A("s_cmp_eq_u32 s3, 2")
    A("s_cbranch_scc1 L_h2")
    ldsinc(FL_F, 7)
    if boost:
        A.c("rank of this workgroup inside its group at a mid-stream milestone (speed only: decides the load window)")
        A("s_mul_i32 s67, s48, 0x01010101"); A("s_xor_b32 s67, s67, 0xffaa5500")
        A("s_lshl_b32 s72, s28, 7"); A(f"s_add_u32 s72, s72, {WS_RB}"); A("v_lshl_add_u32 v13, v0, 2, s72")
        A("s_lshl_b32 s73, s29, 2"); A("s_add_u32 s72, s72, s73"); A("v_mov_b32 v12, s72"); A("v_mov_b32 v14, s67")
        if xl:
            A.c("start time of this group, for the others to compare with: a group that started late gets a bonus")
            A(f"v_lshlrev_b32 v17, 7, v0"); A(f"v_add_u32 v17, {WS_RB + 2048}, v17")
            A("s_cmp_lg_u32 s29, 0"); A("s_cbranch_scc1 L_nts")
            A("s_lshl_b32 s72, s28, 7"); A(f"s_add_u32 s72, s72, {WS_RB + 2048}")
            A("v_mov_b32 v18, s72"); A("v_mov_b32 v20, s56"); A("v_mov_b32 v21, s67")
            A("s_mov_b64 exec, 1")
            A("global_store_dwordx2 v18, v[20:21], s[26:27] sc1")
            A("s_mov_b64 exec, -1")
            A.label("L_nts")
            ldswait(FL_D, None, 7, 8)
            A("s_mov_b64 exec, 0xff")
            A(f"global_load_dwordx2 v[20:21], v17, s[26:27] {pflags}")
            A("s_waitcnt vmcnt(0)")
            A("v_sub_u32 v20, s56, v20")
            A("v_cmp_eq_u32 vcc, s67, v21")
            A("v_cndmask_b32 v20, 0, v20, vcc")
            A("v_med3_i32 v20, v20, s68, s68" if False else "v_max_i32 v20, -200, v20"); A("v_min_i32 v20, 200, v20")
            allred8("v_add_u32", 20)
            A("v_readfirstlane_b32 s74, v20")
            A("s_mov_b64 exec, -1")
            A(f"s_mul_i32 s74, s74, {xl}"); A("s_ashr_i32 s74, s74, 8")
        for q in range(len(ms)):
            ldswait(FL_M, 8 * (q + 1), 7, 2, ge=True)
            A("s_mov_b32 exec_hi, 0")
            A(f"global_load_dword v16, v13, s[26:27] offset:{1024*q} {pflags}")
            A("s_mov_b32 exec_lo, 1")
            A(f"global_store_dword v12, v14, s[26:27] offset:{1024*q}")
            A("s_mov_b32 exec_lo, -1")
            A("s_waitcnt vmcnt(1)")
            A("v_cmp_eq_u32 vcc, s67, v16")
            A("s_bcnt1_i32_b64 s72, vcc")
            if xl: A("s_add_i32 s72, s72, s74"); A("s_max_i32 s72, s72, 0")
            A("s_mov_b64 exec, -1")
            A("v_mov_b32 v16, s72")
            A(f"ds_write_b32 v1, v16 offset:{FL_RANK}")
    A("s_branch L_tail")
    A.label("L_h2")
    A.c("Every workgroup writes (XCC id + 1) into its byte of d_debug (zero at launch) with a plain store; seeing all 32")
    A.c("bytes of the group equal to ours proves the group shares this L2 (mode 1).  Otherwise, or if the others do not")
    A.c("show up in time, hand-offs go write-through (mode 2).")
    A("s_mov_b64 exec, 0xff")
    if xdelay: A(f"s_sleep {xdelay}")
    A("s_mov_b32 s78, 2")
    A("s_mov_b32 s67, 0")
    A.label("L_xr")
    A("s_add_u32 s67, s67, 1")
    A(f"s_cmp_gt_u32 s67, {xtries}")
    A("s_cbranch_scc1 L_xe")
    if xpoll == "s":
        A("s_load_dwordx8 s[32:39], s[24:25], s62 glc")
        A("s_mov_b32 s69, s66"); A("s_mov_b32 s68, s66")
        A("s_waitcnt lgkmcnt(0)")
        for k in range(4): A(f"s_xor_b64 s[{32+2*k}:{33+2*k}], s[{32+2*k}:{33+2*k}], s[68:69]")
        A("s_or_b64 s[32:33], s[32:33], s[34:35]"); A("s_or_b64 s[36:37], s[36:37], s[38:39]"); A("s_or_b64 s[32:33], s[32:33], s[36:37]")
        A("s_cbranch_scc1 L_xr")
    else:
        A(f"global_load_dword v14, v13, s[24:25] {pflags}")
        A("s_waitcnt vmcnt(0)")
        A("v_cmp_ne_u32 vcc, s66, v14")
        A("s_cbranch_vccnz L_xr")
    if not force_slow: A("s_mov_b32 s78, 1")
    A.label("L_xe")
    A("s_mov_b64 exec, -1")
    A("v_mov_b32 v16, s78")
    A(f"ds_write_b32 v1, v16 offset:{FL_MODE}")
    stamp(2)
    A("s_branch L_tail")
    A.label("L_h01")
    FX = 32
    if dbg & 16:
        A("v_mov_b32 v16, 1"); A(f"ds_write_b32 v1, v16 offset:{FL_Q}"); A("v_mov_b32 v16, 2"); A(f"ds_write_b32 v1, v16 offset:{FL_F}"); A("s_branch L_done")
    A("s_waitcnt vmcnt(0)")
    stamp(2)
    for k in range(16):
        A(f"v_lshlrev_b32 v{FX+2*k}, 16, v{XR+k}")
        A(f"v_and_b32 v{FX+2*k+1}, 0xffff0000, v{XR+k}")
    S = 64
    for k in range(8): A(f"v_pk_add_f32 v[{S+2*k}:{S+2*k+1}], v[{FX+4*k}:{FX+4*k+1}], v[{FX+4*k+2}:{FX+4*k+3}]")
    for n in (4, 2, 1):
        for k in range(n): A(f"v_pk_add_f32 v[{S+2*k}:{S+2*k+1}], v[{S+2*k}:{S+2*k+1}], v[{S+2*(k+n)}:{S+2*(k+n)+1}]")
    A(f"v_add_f32 v12, v{S}, v{S+1}")
    for r in (8, 4, 2, 1): A(f"v_add_f32_dpp v12, v12, v12 row_ror:{r} {DPP}")
    A(f"v_mul_f32 v12, {hex(f2u(1/512))}, v12 ; mean (f32)")
    for k in range(16):
        A(f"v_pk_add_f32 v[{S+2*k}:{S+2*k+1}], v[{FX+2*k}:{FX+2*k+1}], v[12:13] op_sel_hi:[1,0] neg_lo:[0,1] neg_hi:[0,1]")
    for k in range(4): A(f"v_pk_mul_f32 v[{96+2*k}:{96+2*k+1}], v[{S+2*k}:{S+2*k+1}], v[{S+2*k}:{S+2*k+1}]")
    for k in range(4, 16):
        q = k & 3
        A(f"v_pk_fma_f32 v[{96+2*q}:{96+2*q+1}], v[{S+2*k}:{S+2*k+1}], v[{S+2*k}:{S+2*k+1}], v[{96+2*q}:{96+2*q+1}]")
    A("v_pk_add_f32 v[96:97], v[96:97], v[98:99]"); A("v_pk_add_f32 v[100:101], v[100:101], v[102:103]")
    A("v_pk_add_f32 v[96:97], v[96:97], v[100:101]")
    A("v_add_f32 v14, v96, v97")
    for r in (8, 4, 2, 1): A(f"v_add_f32_dpp v14, v14, v14 row_ror:{r} {DPP}")
    A(f"v_mul_f32 v14, {hex(f2u(1/512))}, v14 ; var")
    A("v_cvt_pk_bf16_f32 v12, 0, v12")
    A("v_cvt_pk_bf16_f32 v14, 0, v14")
    A(f"v_add_f32 v14, {hex(f2u(1e-5))}, v14")
    A("v_cvt_pk_bf16_f32 v14, 0, v14")
    A("v_sqrt_f32 v14, v14")
    A("v_cvt_pk_bf16_f32 v14, 0, v14")
    A("v_rcp_f32 v14, v14")
    for k in range(4):
        A(f"v_pk_add_f32 v[{S+2*k}:{S+2*k+1}], v[{FX+2*k}:{FX+2*k+1}], v[12:13] op_sel_hi:[1,0] neg_lo:[0,1] neg_hi:[0,1]")
    for k in range(4): A(f"v_cvt_pk_bf16_f32 v{XR+k}, v{S+2*k}, v{S+2*k+1}")
    for k in range(4):
        A(f"v_lshlrev_b32 v{S+2*k}, 16, v{XR+k}")
        A(f"v_and_b32 v{S+2*k+1}, 0xffff0000, v{XR+k}")
    for k in range(4): A(f"v_pk_mul_f32 v[{S+2*k}:{S+2*k+1}], v[{S+2*k}:{S+2*k+1}], v[14:15] op_sel_hi:[1,0]")
    for k in range(4): A(f"v_cvt_pk_bf16_f32 v{XR+k}, v{S+2*k}, v{S+2*k+1}")
    A("s_mul_i32 s72, s3, 0x500")
    A(f"v_mul_u32_u24 v5, {XNP}, v3"); A("v_lshl_add_u32 v5, v4, 4, v5"); A("v_add_u32 v5, s72, v5")
    A(f"ds_write_b128 v5, v[{XR}:{XR+3}] offset:{L_XN}")
    A(f"v_mul_u32_u24 v5, {XNP}, v11"); A("v_lshl_add_u32 v5, v3, 4, v5")
    XF = 32
    WF = 96
    A("s_waitcnt lgkmcnt(0)")
    tags_from_epoch()
    A("s_cmp_eq_u32 s3, 0")
    A("s_cbranch_scc0 L_hf")

    A.c("---- wave 0: q projection, q gather, softmax stats ----")
    for s in range(4): A(f"ds_read_b128 v[{XF+4*s}:{XF+4*s+3}], v5 offset:{L_XN + 64*s}")
    A.c("q publish address: QBOX + ((hkv*4+b)*4 + kq4)*2048 + cgq*256 + nt*64 + g*16")
    A("s_lshl_b32 s72, s28, 15"); A("s_lshl_b32 s73, s30, 11"); A("s_add_u32 s72, s72, s73")
    A("s_lshl_b32 s73, s31, 8"); A("s_add_u32 s72, s72, s73"); A(f"s_add_u32 s72, s72, {WS_QBOX}")
    A("v_lshlrev_b32 v5, 13, v11"); A("v_lshl_add_u32 v5, v3, 4, v5"); A("v_add_u32 v5, s72, v5")
    ldswait(FL_WQ, 8, 7)
    if dbg & 1:
        A("v_mov_b32 v16, 1"); A(f"ds_write_b32 v1, v16 offset:{FL_Q}"); A("v_mov_b32 v16, 2"); A(f"ds_write_b32 v1, v16 offset:{FL_F}"); A("s_branch L_done")
    stamp(3)
    tile_reads(L_WQ, 4, WF)
    A("s_waitcnt lgkmcnt(0)")
    tile_mfma(64, 4, WF, XF)
    A("s_lshl_b32 s72, s77, 13"); A(f"s_add_u32 s72, s72, {WS_QBOX + 4096}")
    A("v_lshlrev_b32 v8, 9, v10 ; h*512")
    A("v_lshl_add_u32 v8, v3, 7, v8"); A("v_lshl_add_u32 v8, v11, 5, v8"); A("v_add_u32 v8, s72, v8")
    getmode(7)
    for k in range(16): A(f"v_and_or_b32 v{64+k}, v{64+k}, v2, {TAU[k&3]}")
    ex16()
    publish([(5, 64+4*nt, nt*64) for nt in range(4)])
    A("s_mov_b64 exec, -1")
    stamp(4)
    if dbg & 32:
        A("v_mov_b32 v16, 1"); A(f"ds_write_b32 v1, v16 offset:{FL_Q}"); A("v_mov_b32 v16, 2"); A(f"ds_write_b32 v1, v16 offset:{FL_F}"); A("s_branch L_done")
    if qdelay: A(f"s_sleep {qdelay}")
    poll([(32 + 8*kq + 4*hf, 8, kq*2048 - 4096 + 16*hf) for kq in range(4) for hf in range(2)], 6, 7, hsleep)
    for k in range(4): A(f"v_pk_add_f32 v[{32+2*k}:{33+2*k}], v[{32+2*k}:{33+2*k}], v[{40+2*k}:{41+2*k}]")
    for k in range(4): A(f"v_pk_add_f32 v[{48+2*k}:{49+2*k}], v[{48+2*k}:{49+2*k}], v[{56+2*k}:{57+2*k}]")
    for k in range(4): A(f"v_pk_add_f32 v[{32+2*k}:{33+2*k}], v[{32+2*k}:{33+2*k}], v[{48+2*k}:{49+2*k}]")
    for k in range(4): A(f"v_cvt_pk_bf16_f32 v{40+k}, v{32+2*k}, v{33+2*k}")
    A("v_lshlrev_b32 v5, 4, v0")
    A(f"ds_write_b128 v5, v[40:43] offset:{L_QF}")
    A("v_mov_b32 v16, s78")
    A(f"ds_write_b32 v1, v16 offset:{FL_Q}")
    stamp(5)
    A("v_and_b32 v5, 31, v0"); A("v_lshlrev_b32 v6, 3, v5")
    A("s_lshl_b32 s72, s77, 9"); A(f"s_add_u32 s72, s72, {WS_SBOX}")
    A("v_lshl_add_u32 v8, v5, 4, s72")
    A("s_lshl_b32 s73, s31, 4"); A("s_add_u32 s73, s73, s72")
    A("v_lshrrev_b32 v9, 3, v5"); A("v_lshl_add_u32 v12, v9, 7, s73")
    A("v_and_b32 v5, 7, v0"); A("v_lshlrev_b32 v5, 4, v5"); A("v_lshl_add_u32 v5, v9, 2, v5 ; F address: u*16 + h*4")
    A(f"s_mov_b32 s64, {hex(CSC)}")
    if dbg & 4:
        A("v_mov_b32 v16, 1"); A("v_mov_b32 v16, 2"); A(f"ds_write_b32 v1, v16 offset:{FL_F}"); A("s_branch L_done")
    ldswait(FL_ST, 8, 19)
    A(f"ds_read_b64 v[16:17], v6 offset:{L_ST}")
    A("s_waitcnt lgkmcnt(0)")
    A("v_mov_b32 v20, v16")
    allred8("v_max_f32", 20)
    A("v_sub_f32 v21, v16, v20"); A("v_mul_f32 v21, s64, v21"); A("v_exp_f32 v21, v21"); A("v_mul_f32 v21, v21, v17")
    A(f"v_or_b32 v20, {T0}, v20")
    allred8("v_add_f32", 21)
    A(f"v_and_or_b32 v21, v21, v2, {T1}")
    A(f"v_mov_b32 v22, {T2}"); A(f"v_mov_b32 v23, {T3}")
    A("s_mov_b32 exec_lo, 0x01010101"); A("s_mov_b32 exec_hi, 0")
    publish([(12, 20, 0)])
    A("s_mov_b32 exec_lo, -1")
    stamp(6)
    if stdelay: A(f"s_sleep {stdelay}")
    poll([(24, 8, 0)], 6, 7, hsleep)
    A("v_and_b32 v24, v2, v24")
    A("v_mov_b32 v20, v24")
    allred8("v_max_f32", 20)
    A("v_sub_f32 v21, v24, v20"); A("v_mul_f32 v21, s64, v21"); A("v_exp_f32 v21, v21"); A("v_mul_f32 v21, v21, v25")
    allred8("v_add_f32", 21)
    A("v_sub_f32 v22, v16, v20"); A("v_mul_f32 v22, s64, v22"); A("v_exp_f32 v22, v22")
    A("v_rcp_f32 v21, v21")
    A("v_mul_f32 v22, v22, v21")
    A("s_mov_b32 exec_hi, 0")
    A(f"ds_write_b32 v5, v22 offset:{L_F}")
    ldsinc(FL_F, 7)
    A("s_branch L_tail")

    A.c("---- wave 1: FFN chain ----")
    A.label("L_hf"); A.reset()
    A("s_mov_b32 s63, 0x07060302")
    A("s_lshl_b32 s64, s28, 3"); A("s_add_u32 s64, s64, s29")
    A("s_cmp_lt_u32 s29, 8")
    A("s_cbranch_scc0 L_nz")
    A.c("clear the 4 accumulator lines of block f (acknowledged long before the gate of block f is published)")
    for k in range(4): A(f"v_mov_b32 v{24+k}, 0")
    A("s_lshl_b32 s72, s64, 9"); A(f"s_add_u32 s72, s72, {WS_ACC}"); A("v_lshl_add_u32 v6, v0, 4, s72")
    A("s_mov_b32 exec_hi, 0")
    A("global_store_dwordx4 v6, v[24:27], s[26:27] sc1")
    A("s_mov_b64 exec, -1")
    A.label("L_nz")
    A("s_cmp_lt_u32 s54, 28")
    A("s_cbranch_scc0 L_hg")
    A("s_and_b32 s72, s55, 1"); A("s_lshl_b32 s72, s72, 7"); A("v_add_u32 v5, s72, v5")
    for s in range(2): A(f"ds_read_b128 v[{XF+4*s}:{XF+4*s+3}], v5 offset:{L_XN + 0x500 + 64*s}")
    A.c("gate/up partial publish address: inbox of owner = 2nt + (g>>1): OBOX + (hkv*32 + owner*4 + (idx&3))*2048 + kq8*256 + mat*128 + b*32 + (g&1)*16")
    A("s_lshl_b32 s72, s28, 16"); A("s_and_b32 s73, s29, 3"); A("s_lshl_b32 s73, s73, 11"); A("s_add_u32 s72, s72, s73")
    A("s_lshl_b32 s73, s55, 8"); A("s_add_u32 s72, s72, s73"); A(f"s_add_u32 s72, s72, {WS_OBOX}")
    A("v_lshrrev_b32 v20, 1, v3"); A("v_lshlrev_b32 v20, 13, v20"); A("v_lshl_add_u32 v20, v11, 5, v20")
    A("v_and_b32 v7, 1, v3"); A("v_lshl_add_u32 v20, v7, 4, v20"); A("v_add_u32 v20, s72, v20")
    for nt in range(1, 4): A(f"v_add_u32 v{20+nt}, {nt*16384}, v20")
    ldswait(FL_GU, 8, 12)
    if dbg & 2: A("s_branch L_done")
    stamp(3)
    tile_reads(L_GA, 2, WF); tile_reads(L_UP, 2, WF + 32)
    A("s_waitcnt lgkmcnt(0)")
    tile_mfma(64, 2, WF, XF); tile_mfma(80, 2, WF + 32, XF)
    getmode(12)
    for k in range(32): A(f"v_and_or_b32 v{64+k}, v{64+k}, v2, {TAU[k&3]}")
    ex16()
    publish([(20 + nt, 64+16*mat+4*nt, mat*128) for mat in range(2) for nt in range(4)])
    A("s_mov_b64 exec, -1")
    stamp(4)
    if dbg & 64: A("s_branch L_done")
    A("s_lshl_b32 s72, s54, 3"); A("s_add_u32 s65, s72, s55")
    A("s_lshl_b32 s72, s28, 5"); A("s_add_u32 s72, s72, s29"); A("s_lshl_b32 s72, s72, 11"); A(f"s_add_u32 s72, s72, {WS_OBOX}")
    A("v_lshlrev_b32 v5, 8, v9"); A("v_and_b32 v8, 7, v0"); A("v_lshl_add_u32 v5, v8, 4, v5"); A("v_add_u32 v5, s72, v5")
    A.c("h publish address (lanes 0..7 = (b, half)): HBOX + (cg*8+kq8)*128 + lane*16")
    A("s_lshl_b32 s72, s65, 7"); A(f"s_add_u32 s72, s72, {WS_HBOX}")
    A("v_lshl_add_u32 v8, v0, 4, s72")
    if fdelay: A(f"s_sleep {fdelay}")
    poll([(20, 5, 0), (24, 5, 128)], 6, 7, hsleep)
    for r in range(4): A(f"v_permlane32_swap_b32 v{20+r}, v{24+r}")
    for r in range(4): A(f"v_add_f32 v{20+r}, v{20+r}, v{24+r}")
    for r in range(4): A(f"v_mov_b32 v{24+r}, v{20+r}")
    for r in range(4): A(f"v_permlane16_swap_b32 v{20+r}, v{24+r}")
    for r in range(4): A(f"v_add_f32 v{20+r}, v{20+r}, v{24+r}")
    for r in range(4): A(f"v_add_f32_dpp v{20+r}, v{20+r}, v{20+r} row_ror:8 {DPP}")
    for r in range(4): A(f"v_cvt_pk_bf16_f32 v{20+r}, 0, v{20+r}")
    for r in range(4): A(f"v_permlane32_swap_b32 v{20+r}, v{24+r}")
    silu(28, 20, 4)
    for r in range(4): A(f"v_mul_f32 v{28+r}, v{28+r}, v{24+r}")
    for r in range(4): A(f"v_cvt_pk_bf16_f32 v{28+r}, 0, v{28+r}")
    for r in range(4): A(f"v_or_b32 v{28+r}, {TAU[r]}, v{28+r}")
    A("s_mov_b64 exec, 0xff")
    A("global_store_dwordx4 v8, v[28:31], s[26:27] sc1")
    A("s_mov_b64 exec, -1")
    stamp(5)
    A.label("L_hg")
    ldsinc(FL_F, 7)
    A("s_cmp_lt_u32 s29, 28")
    A("s_cbranch_scc0 L_tail")
    A("s_lshl_b32 s72, s29, 10"); A(f"s_add_u32 s72, s72, {WS_HBOX}")
    A("v_lshlrev_b32 v5, 5, v11"); A("v_lshl_add_u32 v5, v3, 7, v5"); A("v_add_u32 v5, s72, v5")
    getmode(12)
    ldswait(FL_D, 8, 12, 8)
    tile_reads(L_DN, 2, WF)
    if hgdelay: A(f"s_sleep {hgdelay}")
    ex16()
    poll([(32, 5, 0), (36, 5, 16), (40, 5, 512), (44, 5, 528)], 6, 7, hsleep)
    for k in range(8): A(f"v_perm_b32 v{48+k}, v{33+2*k}, v{32+2*k}, s63")
    A("s_waitcnt lgkmcnt(0)")
    tile_mfma(64, 2, WF, 48)
    A.c("FIN + hkv*32768 + idx*1024 + (2nt + (g>>1))*128 + b*32 + (g&1)*16")
    A("s_lshl_b32 s72, s28, 15"); A("s_lshl_b32 s73, s29, 10"); A("s_add_u32 s72, s72, s73"); A(f"s_add_u32 s72, s72, {WS_FIN}")
    A("v_lshlrev_b32 v5, 5, v11"); A("v_lshrrev_b32 v6, 1, v3"); A("v_lshl_add_u32 v5, v6, 7, v5")
    A("v_and_b32 v6, 1, v3"); A("v_lshl_add_u32 v5, v6, 4, v5"); A("v_add_u32 v5, s72, v5")
    for k in range(16): A(f"v_and_or_b32 v{64+k}, v{64+k}, v2, {TAU[k&3]}")
    ex16()
    publish([(5, 64+4*nt, nt*256) for nt in range(4)])
    A("s_mov_b64 exec, -1")
    stamp(6)
    A("s_cmp_lt_u32 s29, 8")
    A("s_cbranch_scc0 L_tail")
    A.c("gate of block f: sum the 28 partials, silu, publish one line")
    for k in range(4): A(f"v_mov_b32 v{60+k}, {TAU[k]}")
    A("s_lshl_b32 s72, s28, 15"); A("s_lshl_b32 s73, s29, 7"); A("s_add_u32 s72, s72, s73"); A(f"s_add_u32 s72, s72, {WS_FIN}")
    A("v_lshlrev_b32 v20, 10, v9"); A("v_and_b32 v7, 7, v0"); A("v_lshl_add_u32 v20, v7, 4, v20"); A("v_add_u32 v20, s72, v20")
    for t in range(1, 4): A(f"v_add_u32 v{20+t}, {8192*t}, v20")
    A("s_lshl_b32 s72, s64, 7"); A(f"s_add_u32 s72, s72, {WS_G}"); A("v_lshl_add_u32 v8, v0, 4, s72")
    if gdelay: A(f"s_sleep {gdelay}")
    poll([(60, 23, 0), (48, 20, 0), (52, 21, 0), (56, 22, 0)], 6, 7, hsleep, first_mask=0)
    for k in range(2): A(f"v_pk_add_f32 v[{48+2*k}:{49+2*k}], v[{48+2*k}:{49+2*k}], v[{52+2*k}:{53+2*k}]")
    for k in range(2): A(f"v_pk_add_f32 v[{56+2*k}:{57+2*k}], v[{56+2*k}:{57+2*k}], v[{60+2*k}:{61+2*k}]")
    for k in range(2): A(f"v_pk_add_f32 v[{48+2*k}:{49+2*k}], v[{48+2*k}:{49+2*k}], v[{56+2*k}:{57+2*k}]")
    for sw in ("v_permlane32_swap_b32", "v_permlane16_swap_b32"):
        for r in range(4): A(f"v_mov_b32 v{52+r}, v{48+r}")
        for r in range(4): A(f"{sw} v{48+r}, v{52+r}")
        for r in range(4): A(f"v_add_f32 v{48+r}, v{48+r}, v{52+r}")
    for r in range(4): A(f"v_add_f32_dpp v{48+r}, v{48+r}, v{48+r} row_ror:8 {DPP}")
    for r in range(4): A(f"v_cvt_pk_bf16_f32 v{48+r}, 0, v{48+r}")
    silu(52, 48, 4)
    for r in range(4): A(f"v_or_b32 v{52+r}, {TAU[r]}, v{52+r}")
    A("s_mov_b64 exec, 0xff")
    A("global_store_dwordx4 v8, v[52:55], s[26:27] sc1")
    A("s_mov_b64 exec, -1")

    A.c("---- tail (waves 0..3): gather o of batch `wave`, output projection n-tile `wave` ----")
    A.label("L_tail"); A.reset()
    if tprio is not None: A(f"s_setprio {tprio}")
    stamp(7)
    A.c("hop1 gather: OBOX + (hkv*4+wave)*16384 + (4*(l>>5) + t)*2048 + hl*512 + (l&31)*16")
    A("s_lshl_b32 s72, s28, 2"); A("s_add_u32 s72, s72, s3"); A("s_lshl_b32 s72, s72, 14"); A("s_lshl_b32 s73, s30, 9"); A("s_add_u32 s72, s72, s73")
    A(f"s_add_u32 s72, s72, {WS_OBOX + 4096}")
    A("v_lshrrev_b32 v7, 5, v0"); A("v_and_b32 v6, 31, v0")
    A("v_lshlrev_b32 v28, 13, v7"); A("v_lshl_add_u32 v28, v6, 4, v28"); A("v_add_u32 v28, s72, v28")
    A.c("OB write: wave*OBP + (l&31)*8 + (l>>5)*4")
    A(f"s_mul_i32 s72, s3, {OBP}")
    A("v_lshlrev_b32 v29, 3, v6"); A("v_lshl_add_u32 v29, v7, 2, v29"); A("v_add_u32 v29, s72, v29")
    A(f"v_mul_u32_u24 v30, {OBP}, v11"); A("v_lshl_add_u32 v30, v3, 4, v30")
    A.c("wo tr address: base + ((nt ^ f)<<5) ; f = ((i>>3)&1) | ((g&1)<<1)")
    A("v_and_b32 v7, 1, v3"); A("v_bfe_u32 v31, v0, 3, 1"); A("v_lshl_or_b32 v31, v7, 1, v31"); A("v_xor_b32 v31, s3, v31")
    A("v_lshl_add_u32 v31, v31, 5, v15")
    A.c("n0 = 64*gamma + 16*nt + 4g.  gate granule: G + (n0>>3)*128 + b*32 + (g&1)*16 ; x: b*1024 + 2*n0")
    A("s_lshl_b32 s72, s31, 2"); A("s_add_u32 s74, s72, s3")
    A("s_lshl_b32 s72, s74, 8"); A(f"s_add_u32 s72, s72, {WS_G}")
    A("v_lshlrev_b32 v27, 5, v11"); A("v_lshl_add_u32 v27, v7, 4, v27"); A("v_lshrrev_b32 v7, 1, v3"); A("v_lshl_add_u32 v27, v7, 7, v27")
    A("v_add_u32 v27, s72, v27")
    A("s_lshl_b32 s72, s74, 5")
    A("v_lshlrev_b32 v26, 10, v11"); A("v_lshl_add_u32 v26, v3, 3, v26"); A("v_add_u32 v26, s72, v26")
    A("v_mov_b32 v25, 1")
    A("v_cmp_eq_u32 s[60:61], 1, v10")
    A("v_cmp_lt_u32 s[56:57], 1, v10")
    A.c("accumulator address: ACC + (n0/2 + half)*128 + i*4")
    A("s_lshl_b32 s72, s74, 10"); A(f"s_add_u32 s72, s72, {WS_ACC}")
    A("v_lshlrev_b32 v24, 8, v3"); A("v_lshl_add_u32 v24, v4, 2, v24"); A("v_add_u32 v24, s72, v24")
    A("s_mov_b32 s58, 0x00ff00ff"); A("s_mov_b32 s59, 0x00ff00ff")
    A(f"s_mov_b32 s62, {hex(f2u(31.0))}")
    A("s_mov_b64 s[68:69], s[48:49]"); A("s_mov_b64 s[70:71], s[50:51]")
    tags_from_epoch()
    if gtrig == "vp": ldswait(FL_VP, 8, 12, 4)
    else: ldswait(FL_O, None, 12, 2)
    A("global_load_dwordx2 v[20:21], v26, s[4:5]")
    A(f"global_load_dwordx4 v[16:19], v27, s[26:27] {pflags}")
    ldswait(FL_OP, 8, 12, 0)
    poll([(32 + 4*t, 28, 2048*t - 4096) for t in range(4)], 6, 7, osleep)
    stamp(8)
    for k in range(2): A(f"v_pk_add_f32 v[{32+2*k}:{33+2*k}], v[{32+2*k}:{33+2*k}], v[{36+2*k}:{37+2*k}]")
    for k in range(2): A(f"v_pk_add_f32 v[{40+2*k}:{41+2*k}], v[{40+2*k}:{41+2*k}], v[{44+2*k}:{45+2*k}]")
    for k in range(2): A(f"v_pk_add_f32 v[{32+2*k}:{33+2*k}], v[{32+2*k}:{33+2*k}], v[{40+2*k}:{41+2*k}]")
    A("v_permlane32_swap_b32 v32, v34"); A("v_permlane32_swap_b32 v33, v35")
    A("v_pk_add_f32 v[32:33], v[32:33], v[34:35]")
    A("v_cvt_pk_bf16_f32 v32, v32, v33")
    A(f"ds_write_b32 v29, v32 offset:{L_OB}")
    A("s_mov_b64 exec, 1")
    A(f"ds_add_u32 v1, v25 offset:{FL_OB}")
    A("s_mov_b64 exec, -1")
    A.label("L_obr")
    A.c("LDS executes a wave's operations in order: the fragments are valid if the flags read in front of them are complete")
    A(f"ds_read_b64 v[6:7], v1 offset:{FL_WO}")
    for s in range(4):
        A(f"ds_read_b128 v[{48+4*s}:{51+4*s}], v30 offset:{L_OB + 64*s}")
        for t2 in range(2):
            A(f"ds_read_b64_tr_b16 v[{64+4*s+2*t2}:{65+4*s+2*t2}], v31 offset:{L_WO + s*4096 + t2*512}")
    guard()
    def gcheck():
        A("v_xor_b32 v22, s68, v16"); A("v_xor_b32 v23, s69, v17")
        A("v_bitop3_b32 v22, v22, v18, s70 bitop3:0xf6"); A("v_bitop3_b32 v23, v23, v19, s71 bitop3:0xf6")
        A("v_bitop3_b32 v22, v22, v23, v2 bitop3:0x54")
        A("v_cmp_ne_u32 vcc, 0, v22")
    gcheck()
    A("s_cbranch_vccnz L_gw")
    A.label("L_gok")
    A("s_waitcnt lgkmcnt(12)")
    A("v_lshl_add_u32 v6, v6, 3, v7")
    A("v_cmp_ne_u32 vcc, 0x44, v6")
    A("s_cbranch_vccnz L_obw")
    A.label("L_mm")
    for s in range(4):
        A(f"s_waitcnt lgkmcnt({9-3*s})")
        A(f"v_mfma_f32_16x16x32_bf16 v[44:47], v[{64+4*s}:{67+4*s}], v[{48+4*s}:{51+4*s}], " + ("0" if s == 0 else "v[44:47]"))
    A.c("Add this head's share at the memory side.  Lanes 0..8 of a row go out as one request on one line, so the wave")
    A.c("that finds 31 earlier arrivals in the count also gets the sums of all 31 other heads back and finishes the outputs.")
    A("s_mov_b32 exec_lo, 0x01ff01ff"); A("s_mov_b32 exec_hi, 0x01ff01ff")
    A("v_cndmask_b32 v44, v44, v45, s[60:61]"); A("v_cndmask_b32 v45, v46, v47, s[60:61]")
    A("v_cndmask_b32 v44, v44, 1.0, s[56:57]"); A("v_cndmask_b32 v45, v45, 1.0, s[56:57]")
    A("global_atomic_add_f32 v46, v24, v44, s[26:27] sc0 sc1")
    A("global_atomic_add_f32 v47, v24, v45, s[26:27] offset:128 sc0 sc1")
    stamp(9)
    if wb2:
        A(f"s_cmp_lg_u32 s29, {hidx}"); A("s_cbranch_scc1 L_nwb"); A("s_cmp_lg_u32 s3, 3"); A("s_cbranch_scc1 L_nwb")
        A("buffer_wbl2 sc1"); A("s_waitcnt vmcnt(1)"); A("s_branch L_wbd")
        A.label("L_nwb"); A("s_waitcnt vmcnt(0)"); A.label("L_wbd")
    for k in range(4): A(f"v_and_b32 v{16+k}, 0xffff0000, v{16+k}")
    A("v_cndmask_b32 v16, v16, v17, s[60:61]"); A("v_cndmask_b32 v17, v18, v19, s[60:61]")
    A("v_lshlrev_b32 v18, 16, v20"); A("v_and_b32 v20, 0xffff0000, v20"); A("v_lshlrev_b32 v19, 16, v21"); A("v_and_b32 v21, 0xffff0000, v21")
    A("v_cndmask_b32 v18, v18, v20, s[60:61]"); A("v_cndmask_b32 v19, v19, v21, s[60:61] ; x")
    A("v_and_b32 v7, 1, v10"); A("v_lshl_add_u32 v26, v7, 1, v26")
    if not wb2: A("s_waitcnt vmcnt(0)")
    A(f"v_mov_b32_dpp v40, v46 row_newbcast:8 {DPP}"); A(f"v_mov_b32_dpp v41, v47 row_newbcast:8 {DPP}")
    A("v_pk_add_f32 v[44:45], v[44:45], v[46:47]")
    A("v_cmp_eq_f32 s[64:65], s62, v40"); A("v_cmp_eq_f32 s[66:67], s62, v41")
    for k in range(2): A(f"v_cvt_pk_bf16_f32 v{44+k}, 0, v{44+k}")
    A("v_pk_mul_f32 v[44:45], v[44:45], v[16:17]")
    for k in range(2): A(f"v_cvt_pk_bf16_f32 v{44+k}, 0, v{44+k}")
    A("v_pk_add_f32 v[44:45], v[44:45], v[18:19]")
    A("v_cvt_pk_bf16_f32 v44, v44, v45")
    A("s_and_b64 exec, s[64:65], s[58:59]")
    A("s_cbranch_scc0 L_na")
    A("global_store_short v26, v44, s[22:23]")
    A.label("L_na")
    A("s_and_b64 exec, s[66:67], s[58:59]")
    A("s_cbranch_scc0 L_nb")
    A("global_store_short_d16_hi v26, v44, s[22:23] offset:4")
    A.label("L_nb")
    A.c("the wave that finished columns 0/1 knows every workgroup has read the epoch: advance it")
    A("s_cmp_lg_u32 s74, 0")
    A("s_cbranch_scc1 L_done")
    A("s_and_b64 exec, s[64:65], 1")
    A("s_cbranch_scc0 L_done")
    A("v_mov_b32 v5, 0"); A("v_mov_b32 v6, s52")
    A("global_store_dword v5, v6, s[26:27]")
    A.label("L_done")
    if stamps:
        A("s_waitcnt vmcnt(0)")
        stamp(10)
        dump_stamps()
    A.label("L_end")
    A("s_endpgm")
    A.label("L_obw"); A.reset()
    A("s_waitcnt lgkmcnt(0)")
    A("v_cmp_gt_u32 vcc, 0x40, v6")
    A("s_cbranch_vccnz L_obr")
    A.label("L_ob2")
    A(f"ds_read_b32 v7, v1 offset:{FL_OB}")
    for s in range(4): A(f"ds_read_b128 v[{48+4*s}:{51+4*s}], v30 offset:{L_OB + 64*s}")
    guard()
    A("s_waitcnt lgkmcnt(4)")
    A("v_cmp_ne_u32 vcc, 4, v7")
    A("s_cbranch_vccnz L_ob2")
    A("s_waitcnt lgkmcnt(0)")
    A("s_branch L_mm")
    A.label("L_gw"); A.reset()
    A(f"global_load_dwordx4 v[16:19], v27, s[26:27] {pflags}")
    guard()
    A("s_waitcnt vmcnt(0)")
    gcheck()
    A("s_cbranch_vccnz L_gw")
    A("s_branch L_gok")
    A.c("write-through variants of the group-internal publishes")
    for n, stores in slow:
        A.label(f"L_ps{n}"); A.reset()
        for va, d, off in stores: A(f"global_store_dwordx4 v{va}, v[{d}:{d+3}], s[26:27] offset:{off} sc1")
        A("s_nop 1")
        A(f"s_branch L_pd{n}")
    A.label("L_last")
    A.raw('.section .rodata,"a"'); A.raw(".p2align 6"); A.raw(f".amdhsa_kernel {NAME}_kernel")
    A.raw("  .amdhsa_next_free_vgpr 160"); A.raw("  .amdhsa_next_free_sgpr 102"); A.raw("  .amdhsa_accum_offset 160")
    A.raw("  .amdhsa_group_segment_fixed_size 0"); A.raw("  .amdhsa_kernarg_size 96"); A.raw("  .amdhsa_user_sgpr_count 2")
    A.raw("  .amdhsa_user_sgpr_kernarg_segment_ptr 1"); A.raw("  .amdhsa_system_sgpr_workgroup_id_x 1"); A.raw(".end_amdhsa_kernel")
    return A.text()

if __name__ == "__main__":
    out = sys.argv[1] if len(sys.argv) > 1 else f"cdna_kernels/{NAME}.s"
    kw = {}
    for a in sys.argv[2:]:
        k, v = a.split("=")
        try: v = int(v, 0)
        except ValueError: pass
        kw[k] = v
    open(out, "w").write(gen(**kw))
```
